```python
import torch

def _softmax(x, axis=-1):
    return torch.softmax(x, dim=axis)

def _gelu(x):
    return torch.nn.functional.gelu(x, approximate='tanh')

def _silu(x):
    return torch.nn.functional.silu(x)

def _sigmoid(x):
    return torch.sigmoid(x)

def _layernorm(x, axis=-1, eps=1e-05):
    m = x.mean(dim=axis, keepdim=True)
    v = x.var(dim=axis, keepdim=True, unbiased=False)
    return (x - m) / torch.sqrt(v + eps)

def _scatter_add(tgt, idx, src, axis=0):
    return tgt.clone().index_add_(axis, idx, src)

def _segment_sum(src, seg, n):
    out = torch.zeros((n,) + src.shape[1:], dtype=src.dtype)
    return out.index_add_(0, seg, src)

def _pad(x, pw):
    flat = tuple((v for pair in reversed(pw) for v in pair))
    return torch.nn.functional.pad(x, flat)
kernel_name = 'interleave_layers__sliding_local_dilated__mixer_gmlp__prompt'

def setup_inputs():

    _w = lambda a: (lambda t: t.to(torch.bfloat16) if t.is_floating_point() else t)(torch.as_tensor(a))

    def _A_setup():
        B, S, D = (1, 2048, 512)
        return {'x': _w((lambda *s: torch.randn(*s, dtype=torch.bfloat16) * 0.05)(B, S, D)), 'wqkv': _w((lambda *s: torch.randn(*s, dtype=torch.bfloat16) * 0.1)(D, 3 * D)), 'wo': _w((lambda *s: torch.randn(*s, dtype=torch.bfloat16) * 0.1)(D, D))}
    _A_in = _A_setup()

    def _B_setup():
        B, S, D, F = (1, 2048, 512, 1376)
        Fh = F // 2
        return {'x': _w((lambda *s: torch.randn(*s, dtype=torch.bfloat16) * 0.05)(B, S, D)), 'w_in': _w((lambda *s: torch.randn(*s, dtype=torch.bfloat16) * 0.4)(D, 2 * Fh)), 'w_sp': _w(0.01 * (lambda *s: torch.randn(*s, dtype=torch.bfloat16) * 0.4)(S, S)), 'b_sp': _w(1.0 + 0.01 * (lambda *s: torch.randn(*s, dtype=torch.bfloat16) * 0.05)(S)), 'w_out': _w((lambda *s: torch.randn(*s, dtype=torch.bfloat16) * 0.05)(Fh, D))}
    _B_in = _B_setup()
    return {'A_x': _A_in['x'], 'A_wqkv': _A_in['wqkv'], 'A_wo': _A_in['wo'], 'B_x': _B_in['x'], 'B_w_in': _B_in['w_in'], 'B_w_sp': _B_in['w_sp'], 'B_b_sp': _B_in['b_sp'], 'B_w_out': _B_in['w_out']}

def reference(A_x, A_wqkv, A_wo, B_x, B_w_in, B_w_sp, B_b_sp, B_w_out):

    def _A_ref(x, wqkv, wo):
        B, S, D = x.shape
        H = 32
        Dh = D // H
        W, dil = (8, 2)
        qkv = (lambda x, *d: x.permute(*d))((x @ wqkv).reshape(B, S, 3, H, Dh), 2, 0, 3, 1, 4)
        q, k, v = (qkv[0], qkv[1], qkv[2])
        scale = Dh ** (-0.5)
        pos = torch.arange(S)
        off = torch.arange(W) * dil
        idx = pos[:, None] - off[None, :]
        mask = idx >= 0
        idx_c = torch.where(mask, idx, 0).reshape(-1)
        kg = k[:, :, idx_c, :].reshape(B, H, S, W, Dh)
        vg = v[:, :, idx_c, :].reshape(B, H, S, W, Dh)
        logits = torch.einsum('bhsd,bhswd->bhsw', q, kg) * scale
        logits = torch.where(mask[None, None, :, :], logits, -1000000000.0)
        attn = _softmax(logits, axis=-1)
        o = torch.einsum('bhsw,bhswd->bhsd', attn, vg)
        return (lambda x, *d: x.permute(*d))(o, 0, 2, 1, 3).reshape(B, S, D) @ wo

    def _B_ref(x, w_in, w_sp, b_sp, w_out):
        B, S, D = x.shape
        F = w_in.shape[-1]
        Fh = F // 2
        z = _gelu(torch.einsum('bsd,df->bsf', x, w_in))
        z1 = z[..., :Fh].clone()
        z2 = _layernorm(z[..., Fh:], axis=-1)
        g = torch.einsum('ts,bsf->btf', w_sp, z2) + b_sp[None, :, None]
        return torch.einsum('bsf,fd->bsd', z1 * g, w_out)
    x = A_x
    x = x + _A_ref(_layernorm(x, axis=-1), A_wqkv, A_wo)
    x = x + _B_ref(_layernorm(x, axis=-1), B_w_in, B_w_sp, B_b_sp, B_w_out)
    x = x + _A_ref(_layernorm(x, axis=-1), A_wqkv, A_wo)
    x = x + _B_ref(_layernorm(x, axis=-1), B_w_in, B_w_sp, B_b_sp, B_w_out)
    return x
```

```python
import struct, sys

NAME = "interleave_layers__sliding_local_dilated__mixer_gmlp__prompt"
MB = 1 << 20
O_OFF, X1_OFF, X2_OFF, Z1_OFF, Z2_OFF, Z2N_OFF, U_OFF = 0, 2*MB, 4*MB, 6*MB, 9*MB, 12*MB, 15*MB
S, D, FH, UST = 2048, 512, 688, 704

def f2u(f): return struct.unpack("<I", struct.pack("<f", f))[0]

class Asm:
    def __init__(self):
        self.lines = []
    def __call__(self, s):
        self.lines.append("    " + s)
    def label(self, l):
        self.lines.append(l + ":")
    def raw(self, s):
        self.lines.append(s)
    def nop(self, n):
        while n > 0:
            m = min(n, 16)
            self(f"s_nop {m-1}")
            n -= m

def vr(b, n):
    return f"v[{b}:{b+n-1}]" if n > 1 else f"v{b}"
def sr(b, n):
    return f"s[{b}:{b+n-1}]"

P_X, P_WQKV, P_WO, P_BX, P_WIN, P_WSP, P_BSP, P_WOUT, P_OUT, P_DBG, P_WS = 16, 18, 20, 22, 24, 26, 28, 30, 32, 34, 36

def kernel_begin(a, name, nwg):
    a.raw(f".globl {name}")
    a.raw(".p2align 8")
    a.raw(f".type {name},@function")
    a.label(name)
    a(f"s_cmp_ge_u32 s2, {nwg}")
    a(f"s_cbranch_scc1 L_end_{name}")
    a("s_load_dwordx16 s[16:31], s[0:1], 0")
    a("s_load_dwordx4 s[32:35], s[0:1], 64")
    a("s_load_dwordx2 s[36:37], s[0:1], 80")
    a("v_and_b32 v1, 63, v0")
    a("v_lshrrev_b32 v2, 6, v0")
    a("v_and_b32 v3, 15, v0")
    a("v_bfe_u32 v4, v0, 4, 2")
    a("v_readfirstlane_b32 s3, v2")
    a("s_waitcnt lgkmcnt(0)")

def kernel_end(a, name):
    a.label(f"L_end_{name}")
    a("s_endpgm")

def kernel_desc(name, vgpr, sgpr=96):
    vg = (vgpr + 7) // 8 * 8
    return f""".amdhsa_kernel {name}
  .amdhsa_next_free_vgpr {vg}
  .amdhsa_next_free_sgpr {sgpr}
  .amdhsa_accum_offset {vg}
  .amdhsa_group_segment_fixed_size 0
  .amdhsa_kernarg_size 88
  .amdhsa_user_sgpr_count 2
  .amdhsa_user_sgpr_kernarg_segment_ptr 1
  .amdhsa_system_sgpr_workgroup_id_x 1
.end_amdhsa_kernel"""

def srd(a, d, base, off, nbytes):
    if off:
        a(f"s_add_u32 s{d}, s{base}, {off}")
        a(f"s_addc_u32 s{d+1}, s{base+1}, 0")
    else:
        a(f"s_mov_b32 s{d}, s{base}")
        a(f"s_mov_b32 s{d+1}, s{base+1}")
    a(f"s_mov_b32 s{d+2}, {nbytes}")
    a(f"s_mov_b32 s{d+3}, 0x00020000")

def reduce4(a, v, t, op):
    a(f"v_mov_b32 v{t}, v{v}")
    a.nop(2)
    a(f"v_permlane16_swap_b32 v{v}, v{t}")
    a.nop(1)
    a(f"{op} v{v}, v{v}, v{t}")
    a(f"v_mov_b32 v{t}, v{v}")
    a.nop(2)
    a(f"v_permlane32_swap_b32 v{v}, v{t}")
    a.nop(1)
    a(f"{op} v{v}, v{v}, v{t}")

def round_bf16(a, v, t):
    a(f"v_cvt_pk_bf16_f32 v{t}, v{v}, v{v}")
    a(f"v_lshlrev_b32 v{v}, 16, v{t}")

def ln_stats_finish(a, vS, vQ, t, n, vRS, vNM):
    a(f"v_mul_f32 v{vS}, {hex(f2u(1.0/n))}, v{vS}")
    a(f"v_mul_f32 v{vQ}, {hex(f2u(1.0/n))}, v{vQ}")
    a(f"v_fma_f32 v{vQ}, -v{vS}, v{vS}, v{vQ}")
    a(f"v_max_f32 v{vQ}, 0, v{vQ}")
    round_bf16(a, vS, t)
    round_bf16(a, vQ, t)
    a(f"v_add_f32 v{vQ}, {hex(f2u(1e-5))}, v{vQ}")
    round_bf16(a, vQ, t)
    a(f"v_sqrt_f32 v{vQ}, v{vQ}")
    a.nop(1)
    round_bf16(a, vQ, t)
    a(f"v_rcp_f32 v{vRS}, v{vQ}")
    a.nop(1)
    a(f"v_mov_b32 v{vRS+1}, v{vRS}")
    a(f"v_mul_f32 v{vNM}, v{vS}, v{vRS}")
    a(f"v_sub_f32 v{vNM}, 0, v{vNM}")
    a(f"v_mov_b32 v{vNM+1}, v{vNM}")

def normalize_reg(a, x, tl, vRS, vNM):
    a(f"v_lshlrev_b32 v{tl}, 16, v{x}")
    a(f"v_and_b32 v{tl+1}, 0xffff0000, v{x}")
    a(f"v_pk_fma_f32 v[{tl}:{tl+1}], v[{tl}:{tl+1}], v[{vRS}:{vRS+1}], v[{vNM}:{vNM+1}]")
    a(f"v_cvt_pk_bf16_f32 v{x}, v{tl}, v{tl+1}")

TRS = 544

def gen_static(a, name, mode, x_base, x_off):
    qkv = mode == 'qkv'
    NB = 5 if qkv else 4
    RT_BYTES = NB * 16384
    TB0 = RT_BYTES
    TBS = 64 * TRS
    WSTRIDE = 3072 if qkv else 2752
    kernel_begin(a, name, 256)
    sX, sW, sO = 40, 44, 48
    srd(a, sX, x_base, x_off, S * D * 2)
    if qkv:
        srd(a, sW, P_WQKV, 0, 512 * 1536 * 2)
        srd(a, sO, P_WS, O_OFF, S * D * 2)
    else:
        srd(a, sW, P_WIN, 0, 512 * 1376 * 2)
    a("s_lshr_b32 s4, s2, 3")
    a("s_and_b32 s5, s2, 7")
    a("s_lshl_b32 s6, s4, 6")
    a(f"s_mov_b32 s9, 0x3f803f80")
    VTA, VTST, VTG0, VTG1 = 16, 17, 18, 19
    a("v_lshrrev_b32 v5, 3, v0")
    a("v_and_b32 v6, 7, v0")
    a("v_lshlrev_b32 v6, 4, v6")
    a(f"s_mov_b32 s10, {WSTRIDE}")
    a("v_mul_lo_u32 v7, v5, s10")
    a("v_add_u32 v7, v7, v6")
    if qkv:
        a("s_lshl_b32 s11, s5, 7")
    else:
        a("s_lshr_b32 s11, s5, 2")
        a("s_mul_i32 s11, s11, 1376")
        a("s_and_b32 s12, s5, 3")
        a("s_mul_i32 s12, s12, 384")
        a("s_add_u32 s11, s11, s12")
    a(f"v_add_u32 v{VTG0}, s11, v7")
    a(f"v_add_u32 v{VTG1}, {32*WSTRIDE}, v{VTG0}")
    a(f"v_mul_u32_u24 v7, {TRS}, v5")
    a("v_bfe_u32 v8, v5, 3, 1")
    a("v_lshl_add_u32 v7, v8, 7, v7")
    a(f"v_add_u32 v{VTST}, v7, v6")
    a(f"v_add_u32 v{VTST}, {TB0}, v{VTST}")
    PARTG = 1024 if qkv else 128
    STG = 32
    def t_loads(kt):
        a(f"s_mov_b32 s7, {kt*64*WSTRIDE}")
        for i in range(6):
            vo = VTG0 if i < 3 else VTG1
            a(f"buffer_load_dwordx4 {vr(STG+4*i,4)}, v{vo}, {sr(sW,4)}, s7 offen offset:{(i%3)*PARTG}")
    def t_writes(buf):
        for i in range(6):
            off = buf*TBS + (i//3)*32*TRS + (i%3)*128
            a(f"ds_write_b128 v{VTST}, {vr(STG+4*i,4)} offset:{off}")
    t_loads(0)
    a("v_lshrrev_b32 v5, 2, v3")
    a("v_lshl_add_u32 v5, v4, 3, v5")
    a(f"v_mul_u32_u24 v5, {TRS}, v5")
    a("v_and_b32 v6, 1, v4")
    a("v_lshl_add_u32 v5, v6, 7, v5")
    a("v_and_b32 v6, 3, v3")
    a("v_lshl_add_u32 v5, v6, 3, v5")
    if qkv:
        a("v_lshl_add_u32 v5, v2, 5, v5")
    else:
        a("v_mul_u32_u24 v6, 96, v2")
        a("v_add_u32 v5, v5, v6")
    a(f"v_add_u32 v{VTA}, {TB0}, v5")
    for j in range(4):
        a(f"v_add_u32 v5, {4*j}, v4")
        a("v_xor_b32 v5, v5, v3")
        a("v_lshlrev_b32 v5, 4, v5")
        a(f"v_lshl_add_u32 v{8+j}, v3, 10, v5")
        if qkv:
            a(f"v_add_u32 v{12+j}, 0x10000, v{8+j}")
    XF = 56
    vS, vQ, vT, vRS, vNM, vTL = 176, 177, 178, 180, 182, 184
    VO = 186
    VW = 190
    def ln_block(own):
        if own:
            a("v_lshlrev_b32 v5, 4, v2")
        else:
            a("v_mov_b32 v5, 64")
        a("v_add_u32 v5, v5, v3")
        a("v_add_u32 v5, s6, v5")
        if qkv:
            a("v_subrev_u32 v5, 16, v5")
        a("v_lshlrev_b32 v5, 10, v5")
        a("v_lshl_add_u32 v5, v4, 4, v5")
        for jj in range(4):
            if own:
                a(f"v_add_u32 v{VO+jj}, {jj*256}, v5")
            else:
                a(f"v_xor_b32 v6, {jj}, v2")
                a(f"v_lshl_add_u32 v{VO+jj}, v6, 8, v5")
        for j in range(16):
            a(f"buffer_load_dwordx4 {vr(XF+4*j,4)}, v{VO+(j>>2)}, {sr(sX,4)}, 0 offen offset:{(j&3)*64}")
        a(f"v_mov_b32 v{vS}, 0")
        a(f"v_mov_b32 v{vQ}, 0")
        a("s_waitcnt vmcnt(0)")
        for r in range(64):
            a(f"v_dot2_f32_bf16 v{vS}, v{XF+r}, s9, v{vS}")
            a(f"v_dot2_f32_bf16 v{vQ}, v{XF+r}, v{XF+r}, v{vQ}")
        a.nop(3)
        reduce4(a, vS, vT, "v_add_f32")
        reduce4(a, vQ, vT, "v_add_f32")
        ln_stats_finish(a, vS, vQ, vT, 512, vRS, vNM)
        if own:
            a("v_lshlrev_b32 v5, 14, v2")
            for j in range(4):
                a(f"v_add_u32 v{VW+j}, v{8+j}, v5")
        else:
            a("v_lshlrev_b32 v5, 8, v2")
            for j in range(4):
                a(f"v_add_u32 v{VW+j}, v{12+j}, v5")
        nsl = 16 if own else 4
        for j in range(nsl):
            for q in range(4):
                normalize_reg(a, XF+4*j+q, vTL + 2*(q&1), vRS, vNM)
            a(f"ds_write_b128 v{VW+(j&3)}, {vr(XF+4*j,4)} offset:{(j>>2)*256}")
    ln_block(True)
    if qkv:
        a("s_waitcnt lgkmcnt(0)")
        ln_block(False)
    t_writes(0)
    ACC = 120
    NACC = 56 if qkv else 48
    for r in range(NACC):
        a(f"v_mov_b32 v{ACC+r}, 0")
    a("s_waitcnt lgkmcnt(0)")
    a("s_barrier")
    FR = [56, 88]
    def frag_reads(ksg, buf, ks, st):
        base = FR[st]
        for b in range(NB):
            ar = (8 if b < 4 else 12) + (ksg & 3)
            off = (b & 3 if b < 4 else 0) * 16384 + (ksg >> 2) * 256
            a(f"ds_read_b128 {vr(base+4*b,4)}, v{ar} offset:{off}")
        for c in range(3):
            u = c * 4 if qkv else c
            for h in range(2):
                off = buf*TBS + ks*32*TRS + h*4*TRS + u*32
                a(f"ds_read_b64_tr_b16 {vr(base+20+4*c+2*h,2)}, v{VTA} offset:{off}")
    nreads = NB + 6
    def mfmas(st):
        base = FR[st]
        R = lambda b: vr(base+4*b, 4)
        T = lambda c: vr(base+20+4*c, 4)
        if qkv:
            for b in range(5):
                if b > 0:
                    q = ACC + 4*(b-1)
                    a(f"v_mfma_f32_16x16x32_bf16 {vr(q,4)}, {T(0)}, {R(b)}, {vr(q,4)}")
                kk = ACC + 16 + 4*b
                a(f"v_mfma_f32_16x16x32_bf16 {vr(kk,4)}, {T(1)}, {R(b)}, {vr(kk,4)}")
                vv = ACC + 36 + 4*b
                a(f"v_mfma_f32_16x16x32_bf16 {vr(vv,4)}, {R(b)}, {T(2)}, {vr(vv,4)}")
        else:
            for b in range(4):
                for c in range(3):
                    d = ACC + 4*(b*3+c)
                    a(f"v_mfma_f32_16x16x32_bf16 {vr(d,4)}, {T(c)}, {R(b)}, {vr(d,4)}")
    for kt in range(8):
        buf = kt & 1
        if kt < 7:
            t_loads(kt+1)
        frag_reads(2*kt, buf, 0, 0)
        frag_reads(2*kt+1, buf, 1, 1)
        a(f"s_waitcnt lgkmcnt({min(nreads,15)})")
        mfmas(0)
        a("s_waitcnt lgkmcnt(0)")
        mfmas(1)
        if kt < 7:
            a("s_waitcnt vmcnt(0)")
            t_writes(1-buf)
            a("s_waitcnt lgkmcnt(0)")
            a("s_barrier")
    a.nop(10)
    if qkv:
        attn_epilogue(a, ACC, sO)
    else:
        g3_epilogue(a, ACC)
    kernel_end(a, name)
    return 200

def attn_epilogue(a, ACC, sO):
    QF, KF, VF = 56, 64, 74
    for b in range(4):
        for h in range(2):
            a(f"v_cvt_pk_bf16_f32 v{QF+2*b+h}, v{ACC+4*b+2*h}, v{ACC+4*b+2*h+1}")
    for b in range(5):
        for h in range(2):
            a(f"v_cvt_pk_bf16_f32 v{KF+2*b+h}, v{ACC+16+4*b+2*h}, v{ACC+16+4*b+2*h+1}")
            a(f"v_cvt_pk_bf16_f32 v{VF+2*b+h}, v{ACC+36+4*b+2*h}, v{ACC+36+4*b+2*h+1}")
    BI = 20
    NEG = hex(f2u(-1e9))
    a(f"v_mov_b32 v7, {NEG}")
    a("v_lshlrev_b32 v5, 2, v4")
    a("v_sub_u32 v5, v3, v5")
    for s in range(8):
        add = (16 if s < 4 else 0) - (s & 3)
        a(f"v_add_u32 v6, {add & 0xffffffff}, v5")
        a("v_and_b32 v8, 0xfffffff1, v6")
        a("v_cmp_eq_u32 vcc, 0, v8")
        a.nop(2)
        a(f"v_cndmask_b32 v{BI+s}, v7, 0, vcc")
    a("s_cmp_eq_u32 s4, 0")
    a(f"s_cselect_b32 s12, {NEG}, 0")
    a("s_lshl_b32 s13, s5, 2")
    a("s_add_u32 s13, s13, s3")
    a("s_lshl_b32 s13, s13, 5")
    a("v_add_u32 v5, s6, v3")
    a("v_lshlrev_b32 v5, 10, v5")
    a("v_lshl_add_u32 v5, v4, 3, v5")
    a("v_add_u32 v28, s13, v5")
    SC = hex(f2u(0.25 * 1.4426950408889634))
    a(f"s_mov_b32 s14, {SC}")
    for j in range(1, 5):
        SA, SB, PT, T0 = 88, 92, 96, 104
        a(f"v_mfma_f32_16x16x16_bf16 {vr(SA,4)}, {vr(KF+2*(j-1),2)}, {vr(QF+2*(j-1),2)}, 0")
        a(f"v_mfma_f32_16x16x16_bf16 {vr(SB,4)}, {vr(KF+2*j,2)}, {vr(QF+2*(j-1),2)}, 0")
        a.nop(10)
        for p in range(4):
            a(f"v_cvt_pk_bf16_f32 v{T0}, v{SA+2*p}, v{SA+2*p+1}")
            a(f"v_lshlrev_b32 v{SA+2*p}, 16, v{T0}")
            a(f"v_and_b32 v{SA+2*p+1}, 0xffff0000, v{T0}")
        for s in range(8):
            a(f"v_fma_f32 v{SA+s}, v{SA+s}, s14, v{BI+s}")
        if j == 1:
            for s in range(4):
                a(f"v_add_f32 v{SA+s}, s12, v{SA+s}")
        a(f"v_max3_f32 v{T0}, v{SA}, v{SA+1}, v{SA+2}")
        a(f"v_max3_f32 v{T0}, v{T0}, v{SA+3}, v{SA+4}")
        a(f"v_max3_f32 v{T0}, v{T0}, v{SA+5}, v{SA+6}")
        a(f"v_max_f32 v{T0}, v{T0}, v{SA+7}")
        reduce4(a, T0, T0+1, "v_max_f32")
        for s in range(8):
            a(f"v_sub_f32 v{SA+s}, v{SA+s}, v{T0}")
        for s in range(8):
            a(f"v_exp_f32 v{SA+s}, v{SA+s}")
        a.nop(1)
        a(f"v_add_f32 v{T0}, v{SA}, v{SA+1}")
        for s in range(2, 8):
            a(f"v_add_f32 v{T0}, v{T0}, v{SA+s}")
        reduce4(a, T0, T0+1, "v_add_f32")
        a(f"v_rcp_f32 v{T0}, v{T0}")
        a.nop(1)
        for s in range(8):
            a(f"v_mul_f32 v{SA+s}, v{SA+s}, v{T0}")
        for p in range(4):
            a(f"v_cvt_pk_bf16_f32 v{PT+p}, v{SA+2*p}, v{SA+2*p+1}")
        a.nop(2)
        OO = 100
        a(f"v_mfma_f32_16x16x16_bf16 {vr(OO,4)}, {vr(VF+2*(j-1),2)}, {vr(PT,2)}, 0")
        a(f"v_mfma_f32_16x16x16_bf16 {vr(OO,4)}, {vr(VF+2*j,2)}, {vr(PT+2,2)}, {vr(OO,4)}")
        a.nop(10)
        a(f"v_cvt_pk_bf16_f32 v{T0+2}, v{OO}, v{OO+1}")
        a(f"v_cvt_pk_bf16_f32 v{T0+3}, v{OO+2}, v{OO+3}")
        a(f"buffer_store_dwordx2 {vr(T0+2,2)}, v28, {sr(sO,4)}, 0 offen")
        a(f"v_add_u32 v28, {16*1024}, v28")
        a.nop(2)

def g3_epilogue(a, ACC):
    sZ = 48
    a("s_lshr_b32 s12, s5, 2")
    a(f"s_mul_i32 s12, s12, {Z2_OFF - Z1_OFF}")
    a(f"s_add_u32 s12, s12, {Z1_OFF}")
    a(f"s_add_u32 s{sZ}, s{P_WS}, s12")
    a(f"s_addc_u32 s{sZ+1}, s{P_WS+1}, 0")
    a(f"s_mov_b32 s{sZ+2}, {S*FH*2}")
    a(f"s_mov_b32 s{sZ+3}, 0x00020000")
    a("s_and_b32 s13, s5, 3")
    a("s_mul_i32 s13, s13, 192")
    a("s_mul_i32 s14, s3, 48")
    a("s_add_u32 s13, s13, s14")
    a("v_lshlrev_b32 v5, 2, v4")
    a("v_add_u32 v5, s13, v5")
    a("v_add_u32 v6, s6, v3")
    a(f"v_mul_u32_u24 v6, {FH*2}, v6")
    a("v_lshl_add_u32 v6, v5, 1, v6")
    C1 = hex(f2u(0.044715))
    C2 = hex(f2u(-2.0 * 0.7978845608028654 * 1.4426950408889634))
    a(f"s_mov_b32 s12, {C1}")
    a(f"s_mov_b32 s13, {C2}")
    a("v_mov_b32 v9, -1")
    for c in range(3):
        a(f"v_add_u32 v7, {c*16}, v5")
        a(f"v_cmp_gt_u32 vcc, {FH}, v7")
        a(f"v_add_u32 v7, {c*32}, v6")
        a.nop(1)
        a(f"v_cndmask_b32 v{10+c}, v9, v7, vcc")
    for b in range(4):
        for c in range(3):
            d = ACC + 4*(b*3+c)
            T = 56
            for p in range(2):
                a(f"v_cvt_pk_bf16_f32 v{T}, v{d+2*p}, v{d+2*p+1}")
                a(f"v_lshlrev_b32 v{d+2*p}, 16, v{T}")
                a(f"v_and_b32 v{d+2*p+1}, 0xffff0000, v{T}")
            for e in range(4):
                y = d + e; t = T + 1 + e
                a(f"v_mul_f32 v{t}, v{y}, v{y}")
                a(f"v_mul_f32 v{t}, s12, v{t}")
                a(f"v_fma_f32 v{t}, v{t}, v{y}, v{y}")
                a(f"v_mul_f32 v{t}, s13, v{t}")
            for e in range(4):
                a(f"v_exp_f32 v{T+1+e}, v{T+1+e}")
            a.nop(1)
            for e in range(4):
                a(f"v_add_f32 v{T+1+e}, 1.0, v{T+1+e}")
            for e in range(4):
                a(f"v_rcp_f32 v{T+1+e}, v{T+1+e}")
            a.nop(1)
            for e in range(4):
                a(f"v_mul_f32 v{d+e}, v{d+e}, v{T+1+e}")
            a(f"v_cvt_pk_bf16_f32 v{d}, v{d}, v{d+1}")
            a(f"v_cvt_pk_bf16_f32 v{d+1}, v{d+2}, v{d+3}")
            a(f"s_mov_b32 s14, {b*16*FH*2}")
            a(f"buffer_store_dwordx2 {vr(d,2)}, v{10+c}, {sr(sZ,4)}, s14 offen")

def gen_stream(a, name, mode, nk, r_base, r_off, r_bytes, r_stride, t_base, t_bytes, t_stride,
               res_base=None, res_off=0, out_base=None, out_off=0):
    sp = mode == 'sp'
    TN = 96 if sp else 64
    NBW = 3 if sp else 2
    RS = TRS if sp else 288
    RBS = 64 * 128
    TBS = 64 * RS
    RB0 = 0
    TB0 = 2 * RBS
    kernel_begin(a, name, 256)
    sR, sT, sX, sO, sZ, sB = 40, 44, 48, 52, 56, 60
    srd(a, sR, r_base, r_off, r_bytes)
    if sp:
        srd(a, sT, P_WS, Z2N_OFF, S * FH * 2)
        srd(a, sZ, P_WS, Z1_OFF, S * FH * 2)
        srd(a, sO, P_WS, U_OFF, S * UST * 2)
        srd(a, sB, P_BSP, 0, S * 2)
    else:
        srd(a, sT, t_base, 0, t_bytes)
        srd(a, sX, res_base, res_off, S * D * 2)
        srd(a, sO, out_base, out_off, S * D * 2)
    a("s_lshr_b32 s4, s2, 3")
    a("s_and_b32 s5, s2, 7")
    a("s_lshl_b32 s6, s4, 6")
    a(f"s_mul_i32 s10, s5, {TN*2}")
    VRG0, VRG1, VRST, VTG0, VTG1, VTST, VRA0, VRA1, VTA = 8, 9, 10, 11, 12, 13, 14, 15, 16
    a("v_lshrrev_b32 v5, 3, v0")
    a("v_and_b32 v6, 7, v0")
    a("v_add_u32 v7, s6, v5")
    a(f"s_mov_b32 s11, {r_stride}")
    a("v_mul_lo_u32 v7, v7, s11")
    a(f"v_lshl_add_u32 v{VRG0}, v6, 4, v7")
    a(f"v_add_u32 v{VRG1}, {32*r_stride}, v{VRG0}")
    a("v_and_b32 v7, 7, v5")
    a("v_xor_b32 v7, v7, v6")
    a("v_lshlrev_b32 v7, 4, v7")
    a(f"v_lshl_add_u32 v{VRST}, v5, 7, v7")
    if RB0:
        a(f"v_add_u32 v{VRST}, {RB0}, v{VRST}")
    a(f"s_mov_b32 s11, {t_stride}")
    if sp:
        a("v_lshrrev_b32 v5, 2, v0")
        a("v_and_b32 v6, 3, v0")
    else:
        a("v_lshrrev_b32 v5, 3, v0")
        a("v_and_b32 v6, 7, v0")
    a("v_lshlrev_b32 v6, 4, v6")
    a("v_mul_lo_u32 v7, v5, s11")
    a("v_add3_u32 v7, v7, v6, s10")
    a(f"v_mov_b32 v{VTG0}, v7")
    if not sp:
        a(f"v_add_u32 v{VTG1}, {32*t_stride}, v7")
    a(f"v_mul_u32_u24 v7, {RS}, v5")
    a("v_bfe_u32 v17, v5, 3, 1")
    a("v_lshl_add_u32 v7, v17, 7, v7")
    a("v_add_u32 v7, v7, v6")
    a(f"v_add_u32 v{VTST}, {TB0}, v7")
    a("v_lshrrev_b32 v5, 1, v2")
    a("v_and_b32 v6, 1, v2")
    for ks in range(2):
        a(f"v_add_u32 v7, {4*ks}, v4")
        a("v_and_b32 v17, 7, v3")
        a("v_xor_b32 v7, v7, v17")
        a("v_lshlrev_b32 v7, 4, v7")
        a("v_lshl_add_u32 v7, v3, 7, v7")
        a("v_lshl_add_u32 v7, v5, 12, v7")
        a(f"v_add_u32 v{VRA0+ks}, {RB0}, v7")
    a("v_lshrrev_b32 v7, 2, v3")
    a("v_lshl_add_u32 v7, v4, 3, v7")
    a(f"v_mul_u32_u24 v7, {RS}, v7")
    a("v_and_b32 v17, 1, v4")
    a("v_lshl_add_u32 v7, v17, 7, v7")
    a("v_and_b32 v17, 3, v3")
    a("v_lshl_add_u32 v7, v17, 3, v7")
    a(f"v_mul_u32_u24 v17, {NBW*32}, v6")
    a("v_add_u32 v7, v7, v17")
    a(f"v_add_u32 v{VTA}, {TB0}, v7")
    STG = 32
    NT = 3 if sp else 2
    def loads():
        a(f"buffer_load_dwordx4 {vr(STG,4)}, v{VRG0}, {sr(sR,4)}, s7 offen")
        a(f"buffer_load_dwordx4 {vr(STG+4,4)}, v{VRG1}, {sr(sR,4)}, s7 offen")
        for i in range(NT):
            if sp:
                a(f"buffer_load_dwordx4 {vr(STG+8+4*i,4)}, v{VTG0}, {sr(sT,4)}, s8 offen offset:{64*i}")
            else:
                a(f"buffer_load_dwordx4 {vr(STG+8+4*i,4)}, v{VTG0+i}, {sr(sT,4)}, s8 offen")
        a("s_add_u32 s7, s7, 128")
        a(f"s_add_u32 s8, s8, {64*t_stride}")
    def writes(buf):
        a(f"ds_write_b128 v{VRST}, {vr(STG,4)} offset:{buf*RBS}")
        a(f"ds_write_b128 v{VRST}, {vr(STG+4,4)} offset:{buf*RBS+4096}")
        for i in range(NT):
            off = buf*TBS + (64*i if sp else 32*RS*i)
            a(f"ds_write_b128 v{VTST}, {vr(STG+8+4*i,4)} offset:{off}")
    FR = [56, 76]
    ACC = 96
    def frag_reads(buf, ks, st):
        base = FR[st]
        for b in range(2):
            a(f"ds_read_b128 {vr(base+4*b,4)}, v{VRA0+ks} offset:{buf*RBS + b*2048}")
        for c in range(NBW):
            for h in range(2):
                off = buf*TBS + ks*32*RS + h*4*RS + c*32
                a(f"ds_read_b64_tr_b16 {vr(base+8+4*c+2*h,2)}, v{VTA} offset:{off}")
    nreads = 2 + 2*NBW
    def mfmas(st):
        base = FR[st]
        for b in range(2):
            for c in range(NBW):
                d = ACC + 4*(b*NBW+c)
                a(f"v_mfma_f32_16x16x32_bf16 {vr(d,4)}, {vr(base+8+4*c,4)}, {vr(base+4*b,4)}, {vr(d,4)}")
    def body(buf, last):
        if not last:
            loads()
        frag_reads(buf, 0, 0)
        frag_reads(buf, 1, 1)
        a(f"s_waitcnt lgkmcnt({nreads})")
        mfmas(0)
        a("s_waitcnt lgkmcnt(0)")
        mfmas(1)
        if not last:
            a("s_waitcnt vmcnt(0)")
            writes(1-buf)
            a("s_waitcnt lgkmcnt(0)")
            a("s_barrier")
    a("s_mov_b32 s7, 0")
    a("s_mov_b32 s8, 0")
    loads()
    for r in range(2*NBW*4):
        a(f"v_mov_b32 v{ACC+r}, 0")
    a("s_waitcnt vmcnt(0)")
    writes(0)
    a("s_waitcnt lgkmcnt(0)")
    a("s_barrier")
    npairs = (nk - 1) // 2
    rem = (nk - 1) - 2*npairs
    if npairs > 0:
        a(f"s_mov_b32 s9, {npairs}")
        a.label(f"L_loop_{name}")
        body(0, False)
        body(1, False)
        a("s_sub_u32 s9, s9, 1")
        a("s_cmp_lg_u32 s9, 0")
        a(f"s_cbranch_scc1 L_loop_{name}")
    if rem:
        body(0, False)
        body(1, True)
    else:
        body(0, True)
    a.nop(10)
    a("v_lshrrev_b32 v5, 1, v2")
    a("v_and_b32 v6, 1, v2")
    a("v_lshl_add_u32 v5, v5, 5, v3")
    a("v_add_u32 v5, s6, v5")
    a(f"s_mul_i32 s12, s5, {TN}")
    a(f"v_mul_u32_u24 v6, {NBW*16}, v6")
    a("v_lshl_add_u32 v6, v4, 2, v6")
    a("v_add_u32 v6, s12, v6")
    if not sp:
        a("v_lshlrev_b32 v7, 10, v5")
        a("v_lshl_add_u32 v7, v6, 1, v7")
        for b in range(2):
            for c in range(NBW):
                a(f"buffer_load_dwordx2 {vr(40+2*(b*NBW+c),2)}, v7, {sr(sX,4)}, 0 offen offset:{c*32}" if b == 0 else
                  f"buffer_load_dwordx2 {vr(40+2*(b*NBW+c),2)}, v8, {sr(sX,4)}, 0 offen offset:{c*32}")
            if b == 0:
                a(f"v_add_u32 v8, {16*1024}, v7")
        a("s_waitcnt vmcnt(0)")
        for b in range(2):
            for c in range(NBW):
                d = ACC + 4*(b*NBW+c); x = 40 + 2*(b*NBW+c)
                T = 56
                for p in range(2):
                    a(f"v_cvt_pk_bf16_f32 v{T}, v{d+2*p}, v{d+2*p+1}")
                    a(f"v_lshlrev_b32 v{d+2*p}, 16, v{T}")
                    a(f"v_and_b32 v{d+2*p+1}, 0xffff0000, v{T}")
                    a(f"v_lshlrev_b32 v{T+1}, 16, v{x+p}")
                    a(f"v_and_b32 v{T+2}, 0xffff0000, v{x+p}")
                    a(f"v_add_f32 v{d+2*p}, v{d+2*p}, v{T+1}")
                    a(f"v_add_f32 v{d+2*p+1}, v{d+2*p+1}, v{T+2}")
                a(f"v_cvt_pk_bf16_f32 v{d}, v{d}, v{d+1}")
                a(f"v_cvt_pk_bf16_f32 v{d+1}, v{d+2}, v{d+3}")
                a(f"buffer_store_dwordx2 {vr(d,2)}, v{7+b}, {sr(sO,4)}, 0 offen offset:{c*32}")
    else:
        a(f"v_mul_u32_u24 v7, {FH*2}, v5")
        a("v_lshl_add_u32 v7, v6, 1, v7")
        a(f"v_mul_u32_u24 v8, {UST*2}, v5")
        a("v_lshl_add_u32 v8, v6, 1, v8")
        a("v_lshlrev_b32 v9, 1, v5")
        a("v_mov_b32 v17, -1")
        for c in range(NBW):
            a(f"v_add_u32 v18, {c*16}, v6")
            a(f"v_cmp_gt_u32 vcc, {FH}, v18")
            a(f"v_add_u32 v19, {c*32}, v7")
            a.nop(1)
            a(f"v_cndmask_b32 v{20+c}, v17, v19, vcc")
            a(f"v_cmp_gt_u32 vcc, {UST}, v18")
            a(f"v_add_u32 v19, {c*32}, v8")
            a.nop(1)
            a(f"v_cndmask_b32 v{24+c}, v17, v19, vcc")
        a(f"buffer_load_ushort v28, v9, {sr(sB,4)}, 0 offen")
        a(f"buffer_load_ushort v29, v9, {sr(sB,4)}, 0 offen offset:32")
        a(f"s_mov_b32 s12, {16*FH*2}")
        a(f"s_mov_b32 s13, {16*UST*2}")
        for b in range(2):
            for c in range(NBW):
                so = "s12" if b else "0"
                a(f"buffer_load_dwordx2 {vr(40+2*(b*NBW+c),2)}, v{20+c}, {sr(sZ,4)}, {so} offen")
        a("s_waitcnt vmcnt(0)")
        a("v_lshlrev_b32 v28, 16, v28")
        a("v_lshlrev_b32 v29, 16, v29")
        for b in range(2):
            for c in range(NBW):
                d = ACC + 4*(b*NBW+c); x = 40 + 2*(b*NBW+c)
                T = 56
                for p in range(2):
                    a(f"v_cvt_pk_bf16_f32 v{T}, v{d+2*p}, v{d+2*p+1}")
                    a(f"v_lshlrev_b32 v{d+2*p}, 16, v{T}")
                    a(f"v_and_b32 v{d+2*p+1}, 0xffff0000, v{T}")
                    a(f"v_add_f32 v{d+2*p}, v{d+2*p}, v{28+b}")
                    a(f"v_add_f32 v{d+2*p+1}, v{d+2*p+1}, v{28+b}")
                    a(f"v_cvt_pk_bf16_f32 v{T}, v{d+2*p}, v{d+2*p+1}")
                    a(f"v_lshlrev_b32 v{d+2*p}, 16, v{T}")
                    a(f"v_and_b32 v{d+2*p+1}, 0xffff0000, v{T}")
                    a(f"v_lshlrev_b32 v{T+1}, 16, v{x+p}")
                    a(f"v_and_b32 v{T+2}, 0xffff0000, v{x+p}")
                    a(f"v_mul_f32 v{d+2*p}, v{d+2*p}, v{T+1}")
                    a(f"v_mul_f32 v{d+2*p+1}, v{d+2*p+1}, v{T+2}")
                a(f"v_cvt_pk_bf16_f32 v{d}, v{d}, v{d+1}")
                a(f"v_cvt_pk_bf16_f32 v{d+1}, v{d+2}, v{d+3}")
                so = "s13" if b else "0"
                a(f"buffer_store_dwordx2 {vr(d,2)}, v{24+c}, {sr(sO,4)}, {so} offen")
    kernel_end(a, name)
    return 128

def gen_ln2(a, name):
    kernel_begin(a, name, 256)
    sI, sO = 40, 44
    srd(a, sI, P_WS, Z2_OFF, S * FH * 2)
    srd(a, sO, P_WS, Z2N_OFF, S * FH * 2)
    a("s_mov_b32 s9, 0x3f803f80")
    a("s_lshl_b32 s4, s2, 2")
    a("s_add_u32 s4, s4, s3")
    a("s_lshl_b32 s4, s4, 1")
    a(f"s_mul_i32 s5, s4, {FH*2}")
    a("v_lshlrev_b32 v5, 4, v1")
    a("v_add_u32 v5, s5, v5")
    a("v_mov_b32 v7, -1")
    a("v_add_u32 v6, 1024, v5")
    a("v_cmp_gt_u32 vcc, 22, v1")
    a.nop(2)
    a("v_cndmask_b32 v6, v7, v6, vcc")
    a(f"s_mov_b32 s6, {FH*2}")
    for j in range(2):
        so = "s6" if j else "0"
        a(f"buffer_load_dwordx4 {vr(16+8*j,4)}, v5, {sr(sI,4)}, {so} offen")
        a(f"buffer_load_dwordx4 {vr(20+8*j,4)}, v6, {sr(sI,4)}, {so} offen")
    for j in range(2):
        X = 16 + 8*j
        vS, vQ, vT, vRS, vNM, vTL = 40, 41, 42, 44, 46, 48
        a(f"v_mov_b32 v{vS}, 0")
        a(f"v_mov_b32 v{vQ}, 0")
        a(f"s_waitcnt vmcnt({2-2*j})")
        for r in range(8):
            a(f"v_dot2_f32_bf16 v{vS}, v{X+r}, s9, v{vS}")
            a(f"v_dot2_f32_bf16 v{vQ}, v{X+r}, v{X+r}, v{vQ}")
        a.nop(3)
        for v in (vS, vQ):
            for dpp in ("quad_perm:[1,0,3,2]", "quad_perm:[2,3,0,1]", "row_half_mirror", "row_mirror"):
                a(f"v_add_f32_dpp v{v}, v{v}, v{v} {dpp} row_mask:0xf bank_mask:0xf")
                a.nop(2)
            reduce4(a, v, vT, "v_add_f32")
        ln_stats_finish(a, vS, vQ, vT, FH, vRS, vNM)
        for r in range(8):
            normalize_reg(a, X+r, vTL + 2*(r&1), vRS, vNM)
        so = "s6" if j else "0"
        a(f"buffer_store_dwordx4 {vr(X,4)}, v5, {sr(sO,4)}, {so} offen")
        a(f"buffer_store_dwordx4 {vr(X+4,4)}, v6, {sr(sO,4)}, {so} offen")
    kernel_end(a, name)
    return 64

def main():
    a = Asm()
    descs = []
    launches = []
    def add(name, vg, lds):
        descs.append(kernel_desc(name, vg))
        launches.append(f"; @launch kernel={name} grid=(256,1,1) block=(256,1,1) lds={lds}")
    for rnd in range(2):
        xin_base, xin_off = (P_X, 0) if rnd == 0 else (P_WS, X2_OFF)
        xo_base, xo_off = (P_WS, X2_OFF) if rnd == 0 else (P_OUT, 0)
        n = f"g1a{rnd}_kernel"; vg = gen_static(a, n, 'qkv', xin_base, xin_off); add(n, vg, 5*16384 + 2*64*TRS)
        n = f"g2r{rnd}_kernel"
        vg = gen_stream(a, n, 'res', 8, P_WS, O_OFF, S*D*2, 1024, P_WO, 512*512*2, 1024,
                        res_base=xin_base, res_off=xin_off, out_base=P_WS, out_off=X1_OFF)
        add(n, vg, 2*8192 + 2*64*288)
        n = f"g3r{rnd}_kernel"; vg = gen_static(a, n, 'win', P_WS, X1_OFF); add(n, vg, 4*16384 + 2*64*TRS)
        if rnd == 0:
            n = "ln2_kernel"; vg = gen_ln2(a, n); add(n, vg, 0)
            n = "g4_kernel"
            vg = gen_stream(a, n, 'sp', 32, P_WSP, 0, S*S*2, 4096, None, 0, FH*2)
            add(n, vg, 2*8192 + 2*64*TRS)
        else:
            launches.append(launches[3]); launches.append(launches[4])
        n = f"g5r{rnd}_kernel"
        vg = gen_stream(a, n, 'res', 11, P_WS, U_OFF, S*UST*2, UST*2, P_WOUT, FH*512*2, 1024,
                        res_base=P_WS, res_off=X1_OFF, out_base=xo_base, out_off=xo_off)
        add(n, vg, 2*8192 + 2*64*288)
    hdr = open(f"cdna_kernels/{NAME}.s.ref").read().split("\n")
    out = []
    for l in hdr:
        if l.startswith("; @launch"): break
        if "@launch" in l: continue
        out.append(l)
    out += launches
    out.append('.amdgcn_target "amdgcn-amd-amdhsa--gfx950"')
    out.append(".text")
    out += a.lines
    out.append('.section .rodata,"a"')
    for d in descs:
        out.append(".p2align 6")
        out.append(d)
    open(sys.argv[1] if len(sys.argv) > 1 else f"cdna_kernels/{NAME}.s", "w").write("\n".join(out) + "\n")

main()
```

```python
import struct, sys

NAME = "interleave_layers__sliding_local_dilated__mixer_gmlp__prompt"
MB = 1 << 20
O_OFF, X1_OFF, X2_OFF, Z1_OFF, Z2_OFF, Z2N_OFF, U_OFF = 0, 2*MB, 4*MB, 6*MB, 9*MB, 12*MB, 15*MB
S, D, FH, UST = 2048, 512, 688, 704

def f2u(f): return struct.unpack("<I", struct.pack("<f", f))[0]

import os
STAMP = os.environ.get("STAMP", "")
def stamp(a, name, idx):
    if STAMP != name: return
    a("s_memtime s[64:65]")
    a("s_waitcnt lgkmcnt(0)")
    a(f"v_writelane_b32 v250, s64, {idx}")
def stamp_flush(a, name):
    if STAMP != name: return
    a(f"s_add_u32 s64, s{P_WS}, {64*MB}")
    a(f"s_addc_u32 s65, s{P_WS+1}, 0")
    a(f"s_mov_b32 s66, {4*MB}")
    a("s_mov_b32 s67, 0x00020000")
    a("s_lshl_b32 s68, s2, 12")
    a("s_lshl_b32 s69, s39, 8")
    a("s_add_u32 s68, s68, s69")
    a("v_lshlrev_b32 v251, 2, v1")
    a("v_add_u32 v251, s68, v251")
    a("buffer_store_dword v250, v251, s[64:67], 0 offen")
    a("s_waitcnt vmcnt(0)")

class Asm:
    def __init__(self):
        self.lines = []
    def __call__(self, s):
        self.lines.append("    " + s)
    def label(self, l):
        self.lines.append(l + ":")
    def raw(self, s):
        self.lines.append(s)
    def nop(self, n):
        while n > 0:
            m = min(n, 16)
            self(f"s_nop {m-1}")
            n -= m

def vr(b, n):
    return f"v[{b}:{b+n-1}]" if n > 1 else f"v{b}"
def sr(b, n):
    return f"s[{b}:{b+n-1}]"

P_X, P_WQKV, P_WO, P_BX, P_WIN, P_WSP, P_BSP, P_WOUT, P_OUT, P_DBG, P_WS = 16, 18, 20, 22, 24, 26, 28, 30, 32, 34, 36

def kernel_begin(a, name, nwg):
    a.raw(f".globl {name}")
    a.raw(".p2align 8")
    a.raw(f".type {name},@function")
    a.label(name)
    a(f"s_cmp_ge_u32 s2, {nwg}")
    a(f"s_cbranch_scc1 L_end_{name}")
    a("s_load_dwordx16 s[16:31], s[0:1], 0")
    a("s_load_dwordx4 s[32:35], s[0:1], 64")
    a("s_load_dwordx2 s[36:37], s[0:1], 80")
    a("v_and_b32 v1, 63, v0")
    a("v_lshrrev_b32 v5, 6, v0")
    a("v_bfe_u32 v2, v0, 6, 2")
    a("v_and_b32 v3, 15, v0")
    a("v_bfe_u32 v4, v0, 4, 2")
    a("v_readfirstlane_b32 s39, v5")
    a("s_and_b32 s3, s39, 3")
    a("s_lshr_b32 s38, s39, 2")
    if STAMP == name:
        a("v_mov_b32 v250, 0")
        a("s_memtime s[64:65]")
    a("s_waitcnt lgkmcnt(0)")
    if STAMP == name:
        a("v_writelane_b32 v250, s64, 0")

def kernel_end(a, name):
    a.label(f"L_end_{name}")
    a("s_endpgm")

def kernel_desc(name, vgpr, sgpr=96):
    vg = (vgpr + 7) // 8 * 8
    return f""".amdhsa_kernel {name}
  .amdhsa_next_free_vgpr {vg}
  .amdhsa_next_free_sgpr {sgpr}
  .amdhsa_accum_offset {vg}
  .amdhsa_group_segment_fixed_size 0
  .amdhsa_kernarg_size 88
  .amdhsa_user_sgpr_count 2
  .amdhsa_user_sgpr_kernarg_segment_ptr 1
  .amdhsa_system_sgpr_workgroup_id_x 1
.end_amdhsa_kernel"""

def srd(a, d, base, off, nbytes):
    if off:
        a(f"s_add_u32 s{d}, s{base}, {off}")
        a(f"s_addc_u32 s{d+1}, s{base+1}, 0")
    else:
        a(f"s_mov_b32 s{d}, s{base}")
        a(f"s_mov_b32 s{d+1}, s{base+1}")
    a(f"s_mov_b32 s{d+2}, {nbytes}")
    a(f"s_mov_b32 s{d+3}, 0x00020000")

def reduce4(a, v, t, op):
    a(f"v_mov_b32 v{t}, v{v}")
    a.nop(2)
    a(f"v_permlane16_swap_b32 v{v}, v{t}")
    a.nop(1)
    a(f"{op} v{v}, v{v}, v{t}")
    a(f"v_mov_b32 v{t}, v{v}")
    a.nop(2)
    a(f"v_permlane32_swap_b32 v{v}, v{t}")
    a.nop(1)
    a(f"{op} v{v}, v{v}, v{t}")

def round_bf16(a, v, t):
    a(f"v_cvt_pk_bf16_f32 v{t}, v{v}, v{v}")
    a(f"v_lshlrev_b32 v{v}, 16, v{t}")

def ln_stats_finish(a, vS, vQ, t, n, vRS, vNM):
    a(f"v_mul_f32 v{vS}, {hex(f2u(1.0/n))}, v{vS}")
    a(f"v_mul_f32 v{vQ}, {hex(f2u(1.0/n))}, v{vQ}")
    a(f"v_fma_f32 v{vQ}, -v{vS}, v{vS}, v{vQ}")
    a(f"v_max_f32 v{vQ}, 0, v{vQ}")
    round_bf16(a, vS, t)
    round_bf16(a, vQ, t)
    a(f"v_add_f32 v{vQ}, {hex(f2u(1e-5))}, v{vQ}")
    round_bf16(a, vQ, t)
    a(f"v_sqrt_f32 v{vQ}, v{vQ}")
    a.nop(1)
    round_bf16(a, vQ, t)
    a(f"v_rcp_f32 v{vRS}, v{vQ}")
    a.nop(1)
    a(f"v_mov_b32 v{vRS+1}, v{vRS}")
    a(f"v_mul_f32 v{vNM}, v{vS}, v{vRS}")
    a(f"v_sub_f32 v{vNM}, 0, v{vNM}")
    a(f"v_mov_b32 v{vNM+1}, v{vNM}")

def normalize_reg(a, x, tl, vRS, vNM):
    a(f"v_lshlrev_b32 v{tl}, 16, v{x}")
    a(f"v_and_b32 v{tl+1}, 0xffff0000, v{x}")
    a(f"v_pk_fma_f32 v[{tl}:{tl+1}], v[{tl}:{tl+1}], v[{vRS}:{vRS+1}], v[{vNM}:{vNM+1}]")
    a(f"v_cvt_pk_bf16_f32 v{x}, v{tl}, v{tl+1}")


def t_g(a, RS, vk, vg, vt):
    if RS == 192:
        a(f"v_bfe_u32 v{vg}, v{vk}, 3, 1")
    else:
        a(f"v_bfe_u32 v{vg}, v{vk}, 1, 1")
        a(f"v_bfe_u32 v{vt}, v{vk}, 3, 1")
        a(f"v_lshl_or_b32 v{vg}, v{vt}, 1, v{vg}")

def t_dma_addrs(a, RS, NP, stride, s_colbase, qkv, vdst):
    cpr = RS // 16
    magic = {12: 5462, 24: 2731, 8: 8192}[cpr]
    a(f"v_mul_u32_u24 v5, {NP*64}, v2")
    a("v_add_u32 v5, v5, v1")
    a(f"s_mov_b32 s11, {stride}")
    for j in range(NP):
        a(f"v_add_u32 v6, {j*64}, v5")
        a(f"v_mul_u32_u24 v7, {magic}, v6")
        a("v_lshrrev_b32 v7, 16, v7")
        a(f"v_mul_u32_u24 v8, {cpr}, v7")
        a("v_sub_u32 v8, v6, v8")
        t_g(a, RS, 7, 9, 17)
        a("v_lshrrev_b32 v17, 1, v8")
        a("v_xor_b32 v9, v9, v17")
        a("v_and_b32 v8, 1, v8")
        a("v_mul_lo_u32 v7, v7, s11")
        a("v_lshl_add_u32 v7, v8, 4, v7")
        if qkv:
            a("v_lshrrev_b32 v17, 2, v9")
            a("v_lshl_add_u32 v7, v17, 10, v7")
            a("v_and_b32 v9, 3, v9")
        a("v_lshl_add_u32 v7, v9, 5, v7")
        a(f"v_add_u32 v{vdst+j}, {s_colbase}, v7")

def t_frag_addr(a, RS, vdst, vunit, base):
    a("v_lshrrev_b32 v5, 2, v3")
    a("v_lshl_add_u32 v5, v4, 3, v5")
    t_g(a, RS, 5, 6, 7)
    a(f"v_xor_b32 v6, v6, v{vunit}")
    a(f"v_mul_u32_u24 v5, {RS}, v5")
    a("v_lshl_add_u32 v5, v6, 5, v5")
    a("v_and_b32 v6, 3, v3")
    a("v_lshl_add_u32 v5, v6, 3, v5")
    a(f"v_add_u32 v{vdst}, {base}, v5")

def dma(a, voff, srd_, soff, sM, const):
    a(f"s_add_u32 m0, s{sM}, {const}")
    a("s_nop 0")
    a(f"buffer_load_dwordx4 v{voff}, {sr(srd_,4)}, {soff} offen lds")

TRS = 544

def attn_epilogue(a, ACC, sO):
    QF, KF, VF = 56, 64, 74
    for b in range(4):
        for h in range(2):
            a(f"v_cvt_pk_bf16_f32 v{QF+2*b+h}, v{ACC+4*b+2*h}, v{ACC+4*b+2*h+1}")
    for b in range(5):
        for h in range(2):
            a(f"v_cvt_pk_bf16_f32 v{KF+2*b+h}, v{ACC+16+4*b+2*h}, v{ACC+16+4*b+2*h+1}")
            a(f"v_cvt_pk_bf16_f32 v{VF+2*b+h}, v{ACC+36+4*b+2*h}, v{ACC+36+4*b+2*h+1}")
    BI = 20
    NEG = hex(f2u(-1e9))
    a(f"v_mov_b32 v7, {NEG}")
    a("v_lshlrev_b32 v5, 2, v4")
    a("v_sub_u32 v5, v3, v5")
    for s in range(8):
        add = (16 if s < 4 else 0) - (s & 3)
        a(f"v_add_u32 v6, {add & 0xffffffff}, v5")
        a("v_and_b32 v8, 0xfffffff1, v6")
        a("v_cmp_eq_u32 vcc, 0, v8")
        a.nop(2)
        a(f"v_cndmask_b32 v{BI+s}, v7, 0, vcc")
    a("s_cmp_eq_u32 s4, 0")
    a(f"s_cselect_b32 s12, {NEG}, 0")
    a("s_lshl_b32 s13, s5, 2")
    a("s_add_u32 s13, s13, s3")
    a("s_lshl_b32 s13, s13, 5")
    a("v_add_u32 v5, s6, v3")
    a("v_lshlrev_b32 v5, 10, v5")
    a("v_lshl_add_u32 v5, v4, 3, v5")
    a("v_add_u32 v28, s13, v5")
    SC = hex(f2u(0.25 * 1.4426950408889634))
    a(f"s_mov_b32 s14, {SC}")
    for j in range(1, 5):
        SA, SB, PT, T0 = 88, 92, 96, 104
        a(f"v_mfma_f32_16x16x16_bf16 {vr(SA,4)}, {vr(KF+2*(j-1),2)}, {vr(QF+2*(j-1),2)}, 0")
        a(f"v_mfma_f32_16x16x16_bf16 {vr(SB,4)}, {vr(KF+2*j,2)}, {vr(QF+2*(j-1),2)}, 0")
        a.nop(10)
        for p in range(4):
            a(f"v_cvt_pk_bf16_f32 v{T0}, v{SA+2*p}, v{SA+2*p+1}")
            a(f"v_lshlrev_b32 v{SA+2*p}, 16, v{T0}")
            a(f"v_and_b32 v{SA+2*p+1}, 0xffff0000, v{T0}")
        for s in range(8):
            a(f"v_fma_f32 v{SA+s}, v{SA+s}, s14, v{BI+s}")
        if j == 1:
            for s in range(4):
                a(f"v_add_f32 v{SA+s}, s12, v{SA+s}")
        a(f"v_max3_f32 v{T0}, v{SA}, v{SA+1}, v{SA+2}")
        a(f"v_max3_f32 v{T0}, v{T0}, v{SA+3}, v{SA+4}")
        a(f"v_max3_f32 v{T0}, v{T0}, v{SA+5}, v{SA+6}")
        a(f"v_max_f32 v{T0}, v{T0}, v{SA+7}")
        reduce4(a, T0, T0+1, "v_max_f32")
        for s in range(8):
            a(f"v_sub_f32 v{SA+s}, v{SA+s}, v{T0}")
        for s in range(8):
            a(f"v_exp_f32 v{SA+s}, v{SA+s}")
        a.nop(1)
        a(f"v_add_f32 v{T0}, v{SA}, v{SA+1}")
        for s in range(2, 8):
            a(f"v_add_f32 v{T0}, v{T0}, v{SA+s}")
        reduce4(a, T0, T0+1, "v_add_f32")
        a(f"v_rcp_f32 v{T0}, v{T0}")
        a.nop(1)
        for s in range(8):
            a(f"v_mul_f32 v{SA+s}, v{SA+s}, v{T0}")
        for p in range(4):
            a(f"v_cvt_pk_bf16_f32 v{PT+p}, v{SA+2*p}, v{SA+2*p+1}")
        a.nop(2)
        OO = 100
        a(f"v_mfma_f32_16x16x16_bf16 {vr(OO,4)}, {vr(VF+2*(j-1),2)}, {vr(PT,2)}, 0")
        a(f"v_mfma_f32_16x16x16_bf16 {vr(OO,4)}, {vr(VF+2*j,2)}, {vr(PT+2,2)}, {vr(OO,4)}")
        a.nop(10)
        a(f"v_cvt_pk_bf16_f32 v{T0+2}, v{OO}, v{OO+1}")
        a(f"v_cvt_pk_bf16_f32 v{T0+3}, v{OO+2}, v{OO+3}")
        a(f"buffer_store_dwordx2 {vr(T0+2,2)}, v28, {sr(sO,4)}, 0 offen")
        a(f"v_add_u32 v28, {16*1024}, v28")
        a.nop(2)

def g3_epilogue(a, ACC):
    sZ = 48
    a("s_lshr_b32 s12, s5, 2")
    a(f"s_mul_i32 s12, s12, {Z2_OFF - Z1_OFF}")
    a(f"s_add_u32 s12, s12, {Z1_OFF}")
    a(f"s_add_u32 s{sZ}, s{P_WS}, s12")
    a(f"s_addc_u32 s{sZ+1}, s{P_WS+1}, 0")
    a(f"s_mov_b32 s{sZ+2}, {S*FH*2}")
    a(f"s_mov_b32 s{sZ+3}, 0x00020000")
    a("s_and_b32 s13, s5, 3")
    a("s_mul_i32 s13, s13, 192")
    a("s_mul_i32 s14, s3, 48")
    a("s_add_u32 s13, s13, s14")
    a("v_lshlrev_b32 v5, 2, v4")
    a("v_add_u32 v5, s13, v5")
    a("v_add_u32 v6, s6, v3")
    a(f"v_mul_u32_u24 v6, {FH*2}, v6")
    a("v_lshl_add_u32 v6, v5, 1, v6")
    C1 = hex(f2u(0.044715))
    C2 = hex(f2u(-2.0 * 0.7978845608028654 * 1.4426950408889634))
    a(f"s_mov_b32 s12, {C1}")
    a(f"s_mov_b32 s13, {C2}")
    a("v_mov_b32 v9, -1")
    for c in range(3):
        a(f"v_add_u32 v7, {c*16}, v5")
        a(f"v_cmp_gt_u32 vcc, {FH}, v7")
        a(f"v_add_u32 v7, {c*32}, v6")
        a.nop(1)
        a(f"v_cndmask_b32 v{10+c}, v9, v7, vcc")
    for b in range(4):
        for c in range(3):
            d = ACC + 4*(b*3+c)
            T = 56
            for p in range(2):
                a(f"v_cvt_pk_bf16_f32 v{T}, v{d+2*p}, v{d+2*p+1}")
                a(f"v_lshlrev_b32 v{d+2*p}, 16, v{T}")
                a(f"v_and_b32 v{d+2*p+1}, 0xffff0000, v{T}")
            for e in range(4):
                y = d + e; t = T + 1 + e
                a(f"v_mul_f32 v{t}, v{y}, v{y}")
                a(f"v_mul_f32 v{t}, s12, v{t}")
                a(f"v_fma_f32 v{t}, v{t}, v{y}, v{y}")
                a(f"v_mul_f32 v{t}, s13, v{t}")
            for e in range(4):
                a(f"v_exp_f32 v{T+1+e}, v{T+1+e}")
            a.nop(1)
            for e in range(4):
                a(f"v_add_f32 v{T+1+e}, 1.0, v{T+1+e}")
            for e in range(4):
                a(f"v_rcp_f32 v{T+1+e}, v{T+1+e}")
            a.nop(1)
            for e in range(4):
                a(f"v_mul_f32 v{d+e}, v{d+e}, v{T+1+e}")
            a(f"v_cvt_pk_bf16_f32 v{d}, v{d}, v{d+1}")
            a(f"v_cvt_pk_bf16_f32 v{d+1}, v{d+2}, v{d+3}")
            a(f"s_mov_b32 s14, {b*16*FH*2}")
            a(f"buffer_store_dwordx2 {vr(d,2)}, v{10+c}, {sr(sZ,4)}, s14 offen")

CFG = {
    'qkv': dict(RM=80, TN=192, NST=4),
    'win': dict(RM=64, TN=192, NST=4),
    'res': dict(RM=64, TN=64, NST=6),
    'sp':  dict(RM=64, TN=96, NST=7),
}
def gemm_lds(mode):
    c = CFG[mode]
    return c['NST'] * (c['RM'] * 128 + 64 * c['TN'] * 2) + 1024

def gen_gemm(a, name, mode, nk, r_base, r_off, r_bytes, r_stride, t_base, t_bytes, t_stride,
             res_base=None, res_off=0, out_base=None, out_off=0):
    c_ = CFG[mode]
    RM, TN, NST = c_['RM'], c_['TN'], c_['NST']
    qkv, win, sp, res = mode == 'qkv', mode == 'win', mode == 'sp', mode == 'res'
    ln = qkv or win
    RS = TN * 2
    RB = RM * 128
    STG = RB + 64 * RS
    STATS = NST * STG
    NPT = TN // 32
    NPR = 3 if RM == 80 else 2
    NI = NPR + NPT
    NRB = RM // 16 if ln else 2
    NCB = 3 if (ln or sp) else 2
    kernel_begin(a, name, 256)
    sR, sT, sX, sO, sZ, sB = 40, 44, 48, 52, 56, 72
    srd(a, sR, r_base, r_off, r_bytes)
    if sp:
        srd(a, sT, P_WS, Z2N_OFF, 8 * S * 192)
        srd(a, sZ, P_WS, Z1_OFF, S * FH * 2)
        srd(a, sO, P_WS, U_OFF, S * UST * 2)
        srd(a, sB, P_BSP, 0, S * 2)
    else:
        srd(a, sT, t_base, 0, t_bytes)
    if res:
        srd(a, sX, res_base, res_off, S * D * 2)
        srd(a, sO, out_base, out_off, S * D * 2)
    if qkv:
        srd(a, sO, P_WS, O_OFF, S * D * 2)
    if sp:
        a("s_and_b32 s4, s2, 31")
        a("s_lshr_b32 s5, s2, 5")
    else:
        a("s_lshr_b32 s4, s2, 3")
        a("s_and_b32 s5, s2, 7")
    a("s_lshl_b32 s6, s4, 6")
    a("s_mov_b32 s9, 0x3f803f80")
    if qkv:
        a("s_lshl_b32 s10, s5, 7")
    elif win:
        a("s_lshr_b32 s10, s5, 2")
        a("s_mul_i32 s10, s10, 1376")
        a("s_and_b32 s12, s5, 3")
        a("s_mul_i32 s12, s12, 384")
        a("s_add_u32 s10, s10, s12")
    else:
        a(f"s_mul_i32 s10, s5, {S*192 if sp else TN*2}")
    VRA = 14
    def r_frag_addrs(blk_expr):
        for ks in range(2):
            a(f"v_add_u32 v7, {4*ks}, v4")
            a("v_and_b32 v17, 7, v3")
            a("v_xor_b32 v7, v7, v17")
            a("v_lshlrev_b32 v7, 4, v7")
            a(f"v_lshl_add_u32 v{VRA+ks}, v3, 7, v7")
            if blk_expr:
                a(blk_expr.format(d=VRA+ks))
    a("s_cmp_eq_u32 s38, 0")
    a(f"s_cbranch_scc1 L_comp_{name}")
    a("s_lshl_b32 s14, s3, 11")
    a(f"s_mul_i32 s15, s3, {NPT*1024}")
    a(f"s_add_u32 s15, s15, {RB}")
    a("s_and_b32 s13, s3, 1")
    a("s_lshl_b32 s13, s13, 10")
    a("s_add_u32 s13, s13, 8192")
    VRG, VTG = 36, 40
    a("v_lshrrev_b32 v5, 3, v1")
    a("v_and_b32 v6, 7, v1")
    a("v_xor_b32 v6, v6, v5")
    a("v_lshl_add_u32 v7, v2, 4, v5")
    a("v_add_u32 v7, s6, v7")
    if qkv:
        a("v_subrev_u32 v7, 16, v7")
    a(f"s_mov_b32 s11, {r_stride}")
    a("v_mul_lo_u32 v7, v7, s11")
    a(f"v_lshl_add_u32 v{VRG}, v6, 4, v7")
    a(f"v_add_u32 v{VRG+1}, {8*r_stride}, v{VRG}")
    if NPR == 3:
        a("v_and_b32 v7, 1, v2")
        a("v_lshl_add_u32 v7, v7, 3, v5")
        a(f"v_add_u32 v7, {64-16}, v7")
        a("v_add_u32 v7, s6, v7")
        a("v_mul_lo_u32 v7, v7, s11")
        a(f"v_lshl_add_u32 v{VRG+2}, v6, 4, v7")
    t_dma_addrs(a, RS, NPT, t_stride, "s10", qkv, VTG)
    def issue(kt):
        st = kt % NST
        a(f"s_mov_b32 s7, {kt*128}")
        a(f"s_mov_b32 s8, {kt*64*t_stride}")
        for j in range(NPT):
            dma(a, VTG+j, sT, "s8", 15, st*STG + j*1024)
        for j in range(2):
            dma(a, VRG+j, sR, "s7", 14, st*STG + j*1024)
        if NPR == 3:
            dma(a, VRG+2, sR, "s7", 13, st*STG)
    for kt in range(NST-1):
        issue(kt)
    vS, vQ, vT, vRS, vNM = 120, 121, 122, 124, 126
    vS4, vQ4 = 128, 129
    XF = 56
    if ln:
        r_frag_addrs("v_lshl_add_u32 v{d}, v2, 11, v{d}")
        for v in (vS, vQ, vS4, vQ4):
            a(f"v_mov_b32 v{v}, 0")
    def stats_step(kt):
        st = kt % NST
        a(f"v_add_u32 v5, {st*STG}, v{VRA}")
        a(f"v_add_u32 v6, {st*STG}, v{VRA+1}")
        a(f"ds_read_b128 {vr(XF,4)}, v5")
        a(f"ds_read_b128 {vr(XF+4,4)}, v6")
        if qkv:
            a("s_lshl_b32 s12, s3, 11")
            a(f"s_sub_u32 s12, {st*STG + 8192}, s12")
            a(f"v_add_u32 v5, s12, v{VRA}")
            a(f"v_add_u32 v6, s12, v{VRA+1}")
            a(f"ds_read_b128 {vr(XF+8,4)}, v5")
            a(f"ds_read_b128 {vr(XF+12,4)}, v6")
        a("s_waitcnt lgkmcnt(0)")
        for r in range(8):
            a(f"v_dot2_f32_bf16 v{vS}, v{XF+r}, s9, v{vS}")
            a(f"v_dot2_f32_bf16 v{vQ}, v{XF+r}, v{XF+r}, v{vQ}")
        if qkv:
            for r in range(8, 16):
                a(f"v_dot2_f32_bf16 v{vS4}, v{XF+r}, s9, v{vS4}")
                a(f"v_dot2_f32_bf16 v{vQ4}, v{XF+r}, v{XF+r}, v{vQ4}")
    def stats_fin(S_, Q_, blk4):
        a.nop(3)
        reduce4(a, S_, vT, "v_add_f32")
        reduce4(a, Q_, vT, "v_add_f32")
        ln_stats_finish(a, S_, Q_, vT, 512, vRS, vNM)
        a(f"v_mov_b32 v{vRS+1}, v{vNM}")
        if blk4:
            a("v_add_u32 v5, 64, v3")
        else:
            a("v_lshl_add_u32 v5, v2, 4, v3")
        a("v_lshlrev_b32 v5, 3, v5")
        a(f"v_add_u32 v5, {STATS}, v5")
        a(f"ds_write_b64 v5, v[{vRS}:{vRS+1}]")
    stamp(a, name, 1)
    for kt in range(nk):
        inflight = min(NST-2, nk-1-kt)
        a(f"s_waitcnt vmcnt({NI*inflight})")
        a("s_barrier")
        stamp(a, name, 2+kt)
        if kt + NST - 1 < nk:
            issue(kt + NST - 1)
        if ln:
            stats_step(kt)
    if ln:
        stats_fin(vS, vQ, False)
        if qkv:
            stats_fin(vS4, vQ4, True)
        a("s_waitcnt lgkmcnt(0)")
        a("s_barrier")
    stamp_flush(a, name)
    a("s_endpgm")
    a.label(f"L_comp_{name}")
    EP = 40
    if res or sp:
        a("v_lshrrev_b32 v5, 1, v2")
        a("v_and_b32 v6, 1, v2")
        a("v_lshl_add_u32 v5, v5, 5, v3")
        a("v_add_u32 v5, s6, v5")
        a(f"s_mul_i32 s12, s5, {TN}")
        a(f"v_mul_u32_u24 v6, {NCB*16}, v6")
        a("v_lshl_add_u32 v6, v4, 2, v6")
        a("v_add_u32 v6, s12, v6")
    if res:
        a("v_lshlrev_b32 v20, 10, v5")
        a("v_lshl_add_u32 v20, v6, 1, v20")
        a(f"v_add_u32 v21, {16*1024}, v20")
        for b in range(2):
            for c in range(NCB):
                a(f"buffer_load_dwordx2 {vr(EP+2*(b*NCB+c),2)}, v{20+b}, {sr(sX,4)}, 0 offen offset:{c*32}")
    if sp:
        a(f"v_mul_u32_u24 v7, {FH*2}, v5")
        a("v_lshl_add_u32 v7, v6, 1, v7")
        a(f"v_mul_u32_u24 v9, {UST*2}, v5")
        a("v_lshl_add_u32 v9, v6, 1, v9")
        a("v_lshlrev_b32 v5, 1, v5")
        a("v_mov_b32 v17, -1")
        for c in range(NCB):
            a(f"v_add_u32 v18, {c*16}, v6")
            a(f"v_cmp_gt_u32 vcc, {FH}, v18")
            a(f"v_add_u32 v19, {c*32}, v7")
            a.nop(1)
            a(f"v_cndmask_b32 v{20+c}, v17, v19, vcc")
            a(f"v_cmp_gt_u32 vcc, {UST}, v18")
            a(f"v_add_u32 v19, {c*32}, v9")
            a.nop(1)
            a(f"v_cndmask_b32 v{24+c}, v17, v19, vcc")
        a(f"buffer_load_ushort v28, v5, {sr(sB,4)}, 0 offen")
        a(f"buffer_load_ushort v29, v5, {sr(sB,4)}, 0 offen offset:32")
        a(f"s_mov_b32 s12, {16*FH*2}")
        a(f"s_mov_b32 s13, {16*UST*2}")
        for b in range(2):
            for c in range(NCB):
                so = "s12" if b else "0"
                a(f"buffer_load_dwordx2 {vr(EP+2*(b*NCB+c),2)}, v{20+c}, {sr(sZ,4)}, {so} offen")
    VTA = 16
    if ln:
        r_frag_addrs(None)
    else:
        a("v_lshrrev_b32 v9, 1, v2")
        r_frag_addrs("v_lshl_add_u32 v{d}, v9, 12, v{d}")
    NTA = 1 if qkv else NCB
    for c in range(NTA):
        if qkv:
            a("v_mov_b32 v9, v2")
        elif win:
            a("v_mul_u32_u24 v9, 3, v2")
            a(f"v_add_u32 v9, {c}, v9")
        else:
            a("v_and_b32 v9, 1, v2")
            a(f"v_mul_u32_u24 v9, {NCB}, v9")
            a(f"v_add_u32 v9, {c}, v9")
        t_frag_addr(a, RS, VTA+c, 9, RB)
    AS = 212
    for st in range(1, NST):
        for ks in range(2):
            a(f"v_add_u32 v{AS+5*(st-1)+ks}, {STG*st}, v{VRA+ks}")
        for c in range(NTA):
            a(f"v_add_u32 v{AS+5*(st-1)+2+c}, {STG*st}, v{VTA+c}")
    ACC = 120
    NACC = 56 if qkv else NRB*NCB*4
    CS = ACC + NACC
    ONES = CS + 12
    for r in range(NACC + (12 if ln else 0)):
        a(f"v_mov_b32 v{ACC+r}, 0")
    if ln:
        for r in range(4):
            a(f"v_mov_b32 v{ONES+r}, s9")
    FR = [56, 88]
    def frag_reads(st_, ks, st):
        base = FR[st]
        ra = (AS+5*(st_-1) if st_ else VRA) + ks
        ta = (AS+5*(st_-1)+2 if st_ else VTA)
        for c in range(3 if qkv else NCB):
            for h in range(2):
                off = ks*32*RS + h*4*RS + (c*128 if qkv else 0)
                a(f"ds_read_b64_tr_b16 {vr(base+20+4*c+2*h,2)}, v{ta + (0 if qkv else c)} offset:{off}")
        for b in range(NRB):
            a(f"ds_read_b128 {vr(base+4*b,4)}, v{ra} offset:{b*2048}")
    nreads = NRB + 2*(3 if qkv else NCB)
    def mfmas(st):
        base = FR[st]
        R = lambda b: vr(base+4*b, 4)
        T = lambda c: vr(base+20+4*c, 4)
        O = vr(ONES, 4)
        if qkv:
            for c in range(2):
                a(f"v_mfma_f32_16x16x32_bf16 {vr(CS+4*c,4)}, {T(c)}, {O}, {vr(CS+4*c,4)}")
            a(f"v_mfma_f32_16x16x32_bf16 {vr(CS+8,4)}, {O}, {T(2)}, {vr(CS+8,4)}")
            for b in range(5):
                if b > 0:
                    q = ACC + 4*(b-1)
                    a(f"v_mfma_f32_16x16x32_bf16 {vr(q,4)}, {T(0)}, {R(b)}, {vr(q,4)}")
                kk = ACC + 16 + 4*b
                a(f"v_mfma_f32_16x16x32_bf16 {vr(kk,4)}, {T(1)}, {R(b)}, {vr(kk,4)}")
                vv = ACC + 36 + 4*b
                a(f"v_mfma_f32_16x16x32_bf16 {vr(vv,4)}, {R(b)}, {T(2)}, {vr(vv,4)}")
        else:
            if win:
                for c in range(3):
                    a(f"v_mfma_f32_16x16x32_bf16 {vr(CS+4*c,4)}, {T(c)}, {O}, {vr(CS+4*c,4)}")
            for b in range(NRB):
                for c in range(NCB):
                    d = ACC + 4*(b*NCB+c)
                    a(f"v_mfma_f32_16x16x32_bf16 {vr(d,4)}, {T(c)}, {R(b)}, {vr(d,4)}")
    stamp(a, name, 1)
    for kt in range(nk):
        a("s_barrier")
        stamp(a, name, 2+kt)
        frag_reads(kt % NST, 0, 0)
        frag_reads(kt % NST, 1, 1)
        a(f"s_waitcnt lgkmcnt({min(nreads,15)})")
        mfmas(0)
        a("s_waitcnt lgkmcnt(0)")
        mfmas(1)
    stamp(a, name, 40)
    if ln:
        a("s_barrier")
        ST = 56
        a("v_lshlrev_b32 v5, 3, v3")
        a("v_lshlrev_b32 v6, 5, v4")
        a(f"v_add_u32 v5, {STATS}, v5")
        a(f"v_add_u32 v6, {STATS}, v6")
        for b in range(NRB):
            a(f"ds_read_b64 {vr(ST+2*b,2)}, v5 offset:{b*128}")
        if qkv:
            for b in range(5):
                a(f"ds_read_b128 {vr(ST+12+8*b,4)}, v6 offset:{b*128}")
                a(f"ds_read_b128 {vr(ST+16+8*b,4)}, v6 offset:{b*128 + 16}")
        a("s_waitcnt lgkmcnt(0)")
        a.nop(6)
        if qkv:
            for b in range(5):
                for e in range(4):
                    if b > 0:
                        q = ACC + 4*(b-1) + e
                        a(f"v_mul_f32 v{q}, v{q}, v{ST+2*b}")
                        a(f"v_fmac_f32 v{q}, v{CS+e}, v{ST+2*b+1}")
                    kk = ACC + 16 + 4*b + e
                    a(f"v_mul_f32 v{kk}, v{kk}, v{ST+2*b}")
                    a(f"v_fmac_f32 v{kk}, v{CS+4+e}, v{ST+2*b+1}")
                    vv = ACC + 36 + 4*b + e
                    a(f"v_mul_f32 v{vv}, v{vv}, v{ST+12+8*b+2*e}")
                    a(f"v_fmac_f32 v{vv}, v{CS+8}, v{ST+12+8*b+2*e+1}")
            attn_epilogue(a, ACC, sO)
        else:
            for b in range(4):
                for c in range(3):
                    for e in range(4):
                        d = ACC + 4*(b*3+c) + e
                        a(f"v_mul_f32 v{d}, v{d}, v{ST+2*b}")
                        a(f"v_fmac_f32 v{d}, v{CS+4*c+e}, v{ST+2*b+1}")
            g3_epilogue(a, ACC)
    else:
        a("s_waitcnt vmcnt(0)")
        a.nop(10)
    if res:
        for b in range(2):
            for c in range(NCB):
                d = ACC + 4*(b*NCB+c); x = EP + 2*(b*NCB+c)
                T = 56
                for p in range(2):
                    a(f"v_cvt_pk_bf16_f32 v{T}, v{d+2*p}, v{d+2*p+1}")
                    a(f"v_lshlrev_b32 v{d+2*p}, 16, v{T}")
                    a(f"v_and_b32 v{d+2*p+1}, 0xffff0000, v{T}")
                    a(f"v_lshlrev_b32 v{T+1}, 16, v{x+p}")
                    a(f"v_and_b32 v{T+2}, 0xffff0000, v{x+p}")
                    a(f"v_add_f32 v{d+2*p}, v{d+2*p}, v{T+1}")
                    a(f"v_add_f32 v{d+2*p+1}, v{d+2*p+1}, v{T+2}")
                a(f"v_cvt_pk_bf16_f32 v{d}, v{d}, v{d+1}")
                a(f"v_cvt_pk_bf16_f32 v{d+1}, v{d+2}, v{d+3}")
                a(f"buffer_store_dwordx2 {vr(d,2)}, v{20+b}, {sr(sO,4)}, 0 offen offset:{c*32}")
    if sp:
        a("v_lshlrev_b32 v28, 16, v28")
        a("v_lshlrev_b32 v29, 16, v29")
        for b in range(2):
            for c in range(NCB):
                d = ACC + 4*(b*NCB+c); x = EP + 2*(b*NCB+c)
                T = 56
                for p in range(2):
                    a(f"v_cvt_pk_bf16_f32 v{T}, v{d+2*p}, v{d+2*p+1}")
                    a(f"v_lshlrev_b32 v{d+2*p}, 16, v{T}")
                    a(f"v_and_b32 v{d+2*p+1}, 0xffff0000, v{T}")
                    a(f"v_add_f32 v{d+2*p}, v{d+2*p}, v{28+b}")
                    a(f"v_add_f32 v{d+2*p+1}, v{d+2*p+1}, v{28+b}")
                    a(f"v_cvt_pk_bf16_f32 v{T}, v{d+2*p}, v{d+2*p+1}")
                    a(f"v_lshlrev_b32 v{d+2*p}, 16, v{T}")
                    a(f"v_and_b32 v{d+2*p+1}, 0xffff0000, v{T}")
                    a(f"v_lshlrev_b32 v{T+1}, 16, v{x+p}")
                    a(f"v_and_b32 v{T+2}, 0xffff0000, v{x+p}")
                    a(f"v_mul_f32 v{d+2*p}, v{d+2*p}, v{T+1}")
                    a(f"v_mul_f32 v{d+2*p+1}, v{d+2*p+1}, v{T+2}")
                a(f"v_cvt_pk_bf16_f32 v{d}, v{d}, v{d+1}")
                a(f"v_cvt_pk_bf16_f32 v{d+1}, v{d+2}, v{d+3}")
                so = "s13" if b else "0"
                a(f"buffer_store_dwordx2 {vr(d,2)}, v{24+c}, {sr(sO,4)}, {so} offen")
    stamp(a, name, 41)
    stamp_flush(a, name)
    kernel_end(a, name)
    return 256 if STAMP else 248

def gen_ln2(a, name):
    kernel_begin(a, name, 256)
    sI, sO = 40, 44
    srd(a, sI, P_WS, Z2_OFF, S * FH * 2)
    srd(a, sO, P_WS, Z2N_OFF, 8 * S * 192)
    a("s_mov_b32 s9, 0x3f803f80")
    a("s_lshl_b32 s4, s2, 2")
    a("s_add_u32 s4, s4, s3")
    a("s_lshl_b32 s4, s4, 1")
    a(f"s_mul_i32 s5, s4, {FH*2}")
    a("v_lshlrev_b32 v5, 4, v1")
    a("v_add_u32 v5, s5, v5")
    a("v_mov_b32 v7, -1")
    a("v_add_u32 v6, 1024, v5")
    a("v_cmp_gt_u32 s[50:51], 22, v1")
    a.nop(2)
    a("v_cndmask_b32 v6, v7, v6, s[50:51]")
    a(f"s_mov_b32 s6, {FH*2}")
    for j in range(2):
        so = "s6" if j else "0"
        a(f"buffer_load_dwordx4 {vr(16+8*j,4)}, v5, {sr(sI,4)}, {so} offen")
        a(f"buffer_load_dwordx4 {vr(20+8*j,4)}, v6, {sr(sI,4)}, {so} offen")
    a("s_mul_i32 s7, s4, 192")
    for g in range(2):
        a(f"v_add_u32 v8, {64*g}, v1")
        a("v_mul_u32_u24 v9, 5462, v8")
        a("v_lshrrev_b32 v9, 16, v9")
        a("v_mul_u32_u24 v10, 12, v9")
        a("v_sub_u32 v10, v8, v10")
        a(f"s_mov_b32 s11, {S*192}")
        a("v_mul_lo_u32 v9, v9, s11")
        a("v_lshl_add_u32 v9, v10, 4, v9")
        a(f"v_add_u32 v{12+g}, s7, v9")
    a("v_cmp_gt_u32 vcc, 32, v1")
    a.nop(2)
    a("v_cndmask_b32 v13, v7, v13, vcc")
    a("s_mov_b32 s8, 192")
    for j in range(2):
        X = 16 + 8*j
        vS, vQ, vT, vRS, vNM, vTL = 40, 41, 42, 44, 46, 48
        a(f"v_mov_b32 v{vS}, 0")
        a(f"v_mov_b32 v{vQ}, 0")
        a(f"s_waitcnt vmcnt({2-2*j})" if j == 0 else "s_waitcnt vmcnt(2)")
        for r in range(8):
            a(f"v_dot2_f32_bf16 v{vS}, v{X+r}, s9, v{vS}")
            a(f"v_dot2_f32_bf16 v{vQ}, v{X+r}, v{X+r}, v{vQ}")
        a.nop(3)
        for v in (vS, vQ):
            for dpp in ("quad_perm:[1,0,3,2]", "quad_perm:[2,3,0,1]", "row_half_mirror", "row_mirror"):
                a(f"v_add_f32_dpp v{v}, v{v}, v{v} {dpp} row_mask:0xf bank_mask:0xf")
                a.nop(2)
            reduce4(a, v, vT, "v_add_f32")
        ln_stats_finish(a, vS, vQ, vT, FH, vRS, vNM)
        for r in range(8):
            normalize_reg(a, X+r, vTL + 2*(r&1), vRS, vNM)
        for r in range(4, 8):
            a(f"v_cndmask_b32 v{X+r}, 0, v{X+r}, s[50:51]")
        so = "s8" if j else "0"
        a(f"buffer_store_dwordx4 {vr(X,4)}, v12, {sr(sO,4)}, {so} offen")
        a(f"buffer_store_dwordx4 {vr(X+4,4)}, v13, {sr(sO,4)}, {so} offen")
    kernel_end(a, name)
    return 64

def main():
    a = Asm()
    descs = []
    launches = []
    def add(name, vg, lds, blk=512):
        descs.append(kernel_desc(name, vg))
        launches.append(f"; @launch kernel={name} grid=(256,1,1) block=({blk},1,1) lds={lds}")
    for rnd in range(2):
        xin_base, xin_off = (P_X, 0) if rnd == 0 else (P_WS, X2_OFF)
        xo_base, xo_off = (P_WS, X2_OFF) if rnd == 0 else (P_OUT, 0)
        n = f"g1a{rnd}_kernel"
        vg = gen_gemm(a, n, 'qkv', 8, xin_base, xin_off, S*D*2, 1024, P_WQKV, 512*1536*2, 3072)
        add(n, vg, gemm_lds('qkv'))
        n = f"g2r{rnd}_kernel"
        vg = gen_gemm(a, n, 'res', 8, P_WS, O_OFF, S*D*2, 1024, P_WO, 512*512*2, 1024,
                      res_base=xin_base, res_off=xin_off, out_base=P_WS, out_off=X1_OFF)
        add(n, vg, gemm_lds('res'))
        if rnd == 0:
            n = "g3_kernel"
            vg = gen_gemm(a, n, 'win', 8, P_WS, X1_OFF, S*D*2, 1024, P_WIN, 512*1376*2, 2752)
            add(n, vg, gemm_lds('win'))
            n = "ln2_kernel"; vg = gen_ln2(a, n); add(n, vg, 0, 256)
            n = "g4_kernel"
            vg = gen_gemm(a, n, 'sp', 32, P_WSP, 0, S*S*2, 4096, None, 0, 192)
            add(n, vg, gemm_lds('sp'))
        else:
            launches.append(launches[2]); launches.append(launches[3]); launches.append(launches[4])
        n = f"g5r{rnd}_kernel"
        vg = gen_gemm(a, n, 'res', 11, P_WS, U_OFF, S*UST*2, UST*2, P_WOUT, FH*512*2, 1024,
                      res_base=P_WS, res_off=X1_OFF, out_base=xo_base, out_off=xo_off)
        add(n, vg, gemm_lds('res'))
    hdr = open(f"cdna_kernels/{NAME}.s.ref").read().split("\n")
    out = []
    for l in hdr:
        if l.startswith("; @launch"): break
        if "@launch" in l: continue
        out.append(l)
    out += launches
    out.append('.amdgcn_target "amdgcn-amd-amdhsa--gfx950"')
    out.append(".text")
    out += a.lines
    out.append('.section .rodata,"a"')
    for d in descs:
        out.append(".p2align 6")
        out.append(d)
    open(sys.argv[1] if len(sys.argv) > 1 else f"cdna_kernels/{NAME}.s", "w").write("\n".join(out) + "\n")

main()
```

```python
import struct, sys

NAME = "interleave_layers__sliding_local_dilated__mixer_gmlp__prompt"
MB = 1 << 20
O_OFF, X1_OFF, X2_OFF, Z1_OFF, Z2_OFF, Z2N_OFF, U_OFF = 0, 2*MB, 4*MB, 6*MB, 9*MB, 12*MB, 15*MB
S, D, FH, UST = 2048, 512, 688, 704

def f2u(f): return struct.unpack("<I", struct.pack("<f", f))[0]

import os
STAMP = os.environ.get("STAMP", "")
def stamp(a, name, idx):
    if STAMP != name: return
    a("s_memtime s[64:65]")
    a("s_waitcnt lgkmcnt(0)")
    a(f"v_writelane_b32 v250, s64, {idx}")
def stamp_flush(a, name):
    if STAMP != name: return
    a(f"s_add_u32 s64, s{P_WS}, {64*MB}")
    a(f"s_addc_u32 s65, s{P_WS+1}, 0")
    a(f"s_mov_b32 s66, {4*MB}")
    a("s_mov_b32 s67, 0x00020000")
    a("s_lshl_b32 s68, s2, 12")
    a("s_lshl_b32 s69, s39, 8")
    a("s_add_u32 s68, s68, s69")
    a("v_lshlrev_b32 v251, 2, v1")
    a("v_add_u32 v251, s68, v251")
    a("buffer_store_dword v250, v251, s[64:67], 0 offen")
    a("s_waitcnt vmcnt(0)")

class Asm:
    def __init__(self):
        self.lines = []
    def __call__(self, s):
        self.lines.append("    " + s)
    def label(self, l):
        self.lines.append(l + ":")
    def raw(self, s):
        self.lines.append(s)
    def nop(self, n):
        while n > 0:
            m = min(n, 16)
            self(f"s_nop {m-1}")
            n -= m

def vr(b, n):
    return f"v[{b}:{b+n-1}]" if n > 1 else f"v{b}"
def sr(b, n):
    return f"s[{b}:{b+n-1}]"

P_X, P_WQKV, P_WO, P_BX, P_WIN, P_WSP, P_BSP, P_WOUT, P_OUT, P_DBG, P_WS = 16, 18, 20, 22, 24, 26, 28, 30, 32, 34, 36

def kernel_begin(a, name, nwg, wait=True):
    a.raw(f".globl {name}")
    a.raw(".p2align 8")
    a.raw(f".type {name},@function")
    a.label(name)
    a(f"s_cmp_ge_u32 s2, {nwg}")
    a(f"s_cbranch_scc1 L_end_{name}")
    a("s_load_dwordx16 s[16:31], s[0:1], 0")
    a("s_load_dwordx4 s[32:35], s[0:1], 64")
    a("s_load_dwordx2 s[36:37], s[0:1], 80")
    a("v_and_b32 v1, 63, v0")
    a("v_lshrrev_b32 v5, 6, v0")
    a("v_bfe_u32 v2, v0, 6, 2")
    a("v_and_b32 v3, 15, v0")
    a("v_bfe_u32 v4, v0, 4, 2")
    a("v_readfirstlane_b32 s39, v5")
    a("s_and_b32 s3, s39, 3")
    a("s_lshr_b32 s38, s39, 2")
    if STAMP == name:
        a("v_mov_b32 v250, 0")
        a("s_memtime s[64:65]")
    if wait or STAMP == name:
        a("s_waitcnt lgkmcnt(0)")
    if STAMP == name:
        a("v_writelane_b32 v250, s64, 0")

def kernel_end(a, name):
    a.label(f"L_end_{name}")
    a("s_endpgm")

def kernel_desc(name, vgpr, sgpr=96):
    vg = (vgpr + 7) // 8 * 8
    return f""".amdhsa_kernel {name}
  .amdhsa_next_free_vgpr {vg}
  .amdhsa_next_free_sgpr {sgpr}
  .amdhsa_accum_offset {vg}
  .amdhsa_group_segment_fixed_size 0
  .amdhsa_kernarg_size 88
  .amdhsa_user_sgpr_count 2
  .amdhsa_user_sgpr_kernarg_segment_ptr 1
  .amdhsa_system_sgpr_workgroup_id_x 1
.end_amdhsa_kernel"""

def srd(a, d, base, off, nbytes):
    if off:
        a(f"s_add_u32 s{d}, s{base}, {off}")
        a(f"s_addc_u32 s{d+1}, s{base+1}, 0")
    else:
        a(f"s_mov_b32 s{d}, s{base}")
        a(f"s_mov_b32 s{d+1}, s{base+1}")
    a(f"s_mov_b32 s{d+2}, {nbytes}")
    a(f"s_mov_b32 s{d+3}, 0x00020000")

def reduce4(a, v, t, op):
    a(f"v_mov_b32 v{t}, v{v}")
    a.nop(2)
    a(f"v_permlane16_swap_b32 v{v}, v{t}")
    a.nop(1)
    a(f"{op} v{v}, v{v}, v{t}")
    a(f"v_mov_b32 v{t}, v{v}")
    a.nop(2)
    a(f"v_permlane32_swap_b32 v{v}, v{t}")
    a.nop(1)
    a(f"{op} v{v}, v{v}, v{t}")

def round_bf16(a, v, t):
    a(f"v_cvt_pk_bf16_f32 v{t}, v{v}, v{v}")
    a(f"v_lshlrev_b32 v{v}, 16, v{t}")

def ln_stats_finish(a, vS, vQ, t, n, vRS, vNM):
    a(f"v_mul_f32 v{vS}, {hex(f2u(1.0/n))}, v{vS}")
    a(f"v_mul_f32 v{vQ}, {hex(f2u(1.0/n))}, v{vQ}")
    a(f"v_fma_f32 v{vQ}, -v{vS}, v{vS}, v{vQ}")
    a(f"v_max_f32 v{vQ}, 0, v{vQ}")
    round_bf16(a, vS, t)
    round_bf16(a, vQ, t)
    a(f"v_add_f32 v{vQ}, {hex(f2u(1e-5))}, v{vQ}")
    round_bf16(a, vQ, t)
    a(f"v_sqrt_f32 v{vQ}, v{vQ}")
    a.nop(1)
    round_bf16(a, vQ, t)
    a(f"v_rcp_f32 v{vRS}, v{vQ}")
    a.nop(1)
    a(f"v_mov_b32 v{vRS+1}, v{vRS}")
    a(f"v_mul_f32 v{vNM}, v{vS}, v{vRS}")
    a(f"v_sub_f32 v{vNM}, 0, v{vNM}")
    a(f"v_mov_b32 v{vNM+1}, v{vNM}")

def normalize_reg(a, x, tl, vRS, vNM):
    a(f"v_lshlrev_b32 v{tl}, 16, v{x}")
    a(f"v_and_b32 v{tl+1}, 0xffff0000, v{x}")
    a(f"v_pk_fma_f32 v[{tl}:{tl+1}], v[{tl}:{tl+1}], v[{vRS}:{vRS+1}], v[{vNM}:{vNM+1}]")
    a(f"v_cvt_pk_bf16_f32 v{x}, v{tl}, v{tl+1}")


def t_g(a, RS, vk, vg, vt):
    if RS == 192:
        a(f"v_bfe_u32 v{vg}, v{vk}, 3, 1")
    else:
        a(f"v_bfe_u32 v{vg}, v{vk}, 1, 1")
        a(f"v_bfe_u32 v{vt}, v{vk}, 3, 1")
        a(f"v_lshl_or_b32 v{vg}, v{vt}, 1, v{vg}")

def t_dma_addrs(a, RS, NP, stride, s_colbase, qkv, vdst):
    cpr = RS // 16
    magic = {12: 5462, 24: 2731, 8: 8192}[cpr]
    a(f"v_mul_u32_u24 v5, {NP*64}, v2")
    a("v_add_u32 v5, v5, v1")
    a(f"s_mov_b32 s11, {stride}")
    for j in range(NP):
        a(f"v_add_u32 v6, {j*64}, v5")
        a(f"v_mul_u32_u24 v7, {magic}, v6")
        a("v_lshrrev_b32 v7, 16, v7")
        a(f"v_mul_u32_u24 v8, {cpr}, v7")
        a("v_sub_u32 v8, v6, v8")
        t_g(a, RS, 7, 9, 17)
        a("v_lshrrev_b32 v17, 1, v8")
        a("v_xor_b32 v9, v9, v17")
        a("v_and_b32 v8, 1, v8")
        a("v_mul_lo_u32 v7, v7, s11")
        a("v_lshl_add_u32 v7, v8, 4, v7")
        if qkv:
            a("v_lshrrev_b32 v17, 2, v9")
            a("v_lshl_add_u32 v7, v17, 10, v7")
            a("v_and_b32 v9, 3, v9")
        a("v_lshl_add_u32 v7, v9, 5, v7")
        a(f"v_add_u32 v{vdst+j}, {s_colbase}, v7")

def t_frag_addr(a, RS, vdst, vunit, base):
    a("v_lshrrev_b32 v5, 2, v3")
    a("v_lshl_add_u32 v5, v4, 3, v5")
    t_g(a, RS, 5, 6, 7)
    a(f"v_xor_b32 v6, v6, v{vunit}")
    a(f"v_mul_u32_u24 v5, {RS}, v5")
    a("v_lshl_add_u32 v5, v6, 5, v5")
    a("v_and_b32 v6, 3, v3")
    a("v_lshl_add_u32 v5, v6, 3, v5")
    a(f"v_add_u32 v{vdst}, {base}, v5")

def dma(a, voff, srd_, soff, sM, const):
    a(f"s_add_u32 m0, s{sM}, {const}")
    a("s_nop 0")
    a(f"buffer_load_dwordx4 v{voff}, {sr(srd_,4)}, {soff} offen lds")

TRS = 544

def attn_epilogue(a, ACC, sO):
    QF, KF, VF = 56, 64, 74
    for b in range(4):
        for h in range(2):
            a(f"v_cvt_pk_bf16_f32 v{QF+2*b+h}, v{ACC+4*b+2*h}, v{ACC+4*b+2*h+1}")
    for b in range(5):
        for h in range(2):
            a(f"v_cvt_pk_bf16_f32 v{KF+2*b+h}, v{ACC+16+4*b+2*h}, v{ACC+16+4*b+2*h+1}")
            a(f"v_cvt_pk_bf16_f32 v{VF+2*b+h}, v{ACC+36+4*b+2*h}, v{ACC+36+4*b+2*h+1}")
    a.nop(2)
    SCB = 120
    for j in range(4):
        a(f"v_mfma_f32_16x16x16_bf16 {vr(SCB+8*j,4)}, {vr(KF+2*j,2)}, {vr(QF+2*j,2)}, 0")
        a(f"v_mfma_f32_16x16x16_bf16 {vr(SCB+8*j+4,4)}, {vr(KF+2*(j+1),2)}, {vr(QF+2*j,2)}, 0")
    BI = 20
    NEG = hex(f2u(-1e9))
    a(f"v_mov_b32 v7, {NEG}")
    a("v_lshlrev_b32 v5, 2, v4")
    a("v_sub_u32 v5, v3, v5")
    for s_ in range(8):
        add = (16 if s_ < 4 else 0) - (s_ & 3)
        a(f"v_add_u32 v6, {add & 0xffffffff}, v5")
        a("v_and_b32 v8, 0xfffffff1, v6")
        a("v_cmp_eq_u32 vcc, 0, v8")
        a.nop(2)
        a(f"v_cndmask_b32 v{BI+s_}, v7, 0, vcc")
    a("s_cmp_eq_u32 s4, 0")
    a(f"s_cselect_b32 s12, {NEG}, 0")
    a("s_lshl_b32 s13, s5, 2")
    a("s_add_u32 s13, s13, s3")
    a("s_lshl_b32 s13, s13, 5")
    a("v_add_u32 v5, s6, v3")
    a("v_lshlrev_b32 v5, 10, v5")
    a("v_lshl_add_u32 v5, v4, 3, v5")
    a("v_add_u32 v28, s13, v5")
    SC = hex(f2u(0.25 * 1.4426950408889634))
    a(f"s_mov_b32 s14, {SC}")
    T0 = 88
    J = range(4)
    for p in range(4):
        for j in J:
            a(f"v_cvt_pk_bf16_f32 v{T0+8+j}, v{SCB+8*j+2*p}, v{SCB+8*j+2*p+1}")
        for j in J:
            a(f"v_lshlrev_b32 v{SCB+8*j+2*p}, 16, v{T0+8+j}")
            a(f"v_and_b32 v{SCB+8*j+2*p+1}, 0xffff0000, v{T0+8+j}")
    for s_ in range(8):
        for j in J:
            a(f"v_fma_f32 v{SCB+8*j+s_}, v{SCB+8*j+s_}, s14, v{BI+s_}")
    for s_ in range(4):
        a(f"v_add_f32 v{SCB+s_}, s12, v{SCB+s_}")
    for j in J:
        a(f"v_max3_f32 v{T0+j}, v{SCB+8*j}, v{SCB+8*j+1}, v{SCB+8*j+2}")
    for j in J:
        a(f"v_max3_f32 v{T0+j}, v{T0+j}, v{SCB+8*j+3}, v{SCB+8*j+4}")
    for j in J:
        a(f"v_max3_f32 v{T0+j}, v{T0+j}, v{SCB+8*j+5}, v{SCB+8*j+6}")
    for j in J:
        a(f"v_max_f32 v{T0+j}, v{T0+j}, v{SCB+8*j+7}")
    def red(op):
        for sw in ("v_permlane16_swap_b32", "v_permlane32_swap_b32"):
            for j in J:
                a(f"v_mov_b32 v{T0+4+j}, v{T0+j}")
            a.nop(1)
            for j in J:
                a(f"{sw} v{T0+j}, v{T0+4+j}")
            a.nop(1)
            for j in J:
                a(f"{op} v{T0+j}, v{T0+j}, v{T0+4+j}")
    red("v_max_f32")
    for s_ in range(8):
        for j in J:
            a(f"v_sub_f32 v{SCB+8*j+s_}, v{SCB+8*j+s_}, v{T0+j}")
    for s_ in range(8):
        for j in J:
            a(f"v_exp_f32 v{SCB+8*j+s_}, v{SCB+8*j+s_}")
    a.nop(1)
    for j in J:
        a(f"v_add_f32 v{T0+j}, v{SCB+8*j}, v{SCB+8*j+1}")
    for s_ in range(2, 8):
        for j in J:
            a(f"v_add_f32 v{T0+j}, v{T0+j}, v{SCB+8*j+s_}")
    red("v_add_f32")
    for j in J:
        a(f"v_rcp_f32 v{T0+j}, v{T0+j}")
    a.nop(1)
    for s_ in range(8):
        for j in J:
            a(f"v_mul_f32 v{SCB+8*j+s_}, v{SCB+8*j+s_}, v{T0+j}")
    PT = 96
    for p in range(4):
        for j in J:
            a(f"v_cvt_pk_bf16_f32 v{PT+4*j+p}, v{SCB+8*j+2*p}, v{SCB+8*j+2*p+1}")
    a.nop(2)
    OO = 152
    for j in J:
        a(f"v_mfma_f32_16x16x16_bf16 {vr(OO+4*j,4)}, {vr(VF+2*j,2)}, {vr(PT+4*j,2)}, 0")
    for j in J:
        a(f"v_mfma_f32_16x16x16_bf16 {vr(OO+4*j,4)}, {vr(VF+2*(j+1),2)}, {vr(PT+4*j+2,2)}, {vr(OO+4*j,4)}")
    a.nop(10)
    for j in J:
        a(f"v_cvt_pk_bf16_f32 v{T0+2*j}, v{OO+4*j}, v{OO+4*j+1}")
        a(f"v_cvt_pk_bf16_f32 v{T0+2*j+1}, v{OO+4*j+2}, v{OO+4*j+3}")
    for j in J:
        a(f"s_mov_b32 s13, {16*1024*j}")
        a(f"buffer_store_dwordx2 {vr(T0+2*j,2)}, v28, {sr(sO,4)}, s13 offen")

def g3_epilogue(a, ACC):
    sZ = 48
    a("s_lshr_b32 s12, s5, 2")
    a(f"s_mul_i32 s12, s12, {Z2_OFF - Z1_OFF}")
    a(f"s_add_u32 s12, s12, {Z1_OFF}")
    a(f"s_add_u32 s{sZ}, s{P_WS}, s12")
    a(f"s_addc_u32 s{sZ+1}, s{P_WS+1}, 0")
    a(f"s_mov_b32 s{sZ+2}, {S*FH*2}")
    a(f"s_mov_b32 s{sZ+3}, 0x00020000")
    a("s_and_b32 s13, s5, 3")
    a("s_mul_i32 s13, s13, 192")
    a("s_mul_i32 s14, s3, 48")
    a("s_add_u32 s13, s13, s14")
    a("v_lshlrev_b32 v5, 2, v4")
    a("v_add_u32 v5, s13, v5")
    a("v_add_u32 v6, s6, v3")
    a(f"v_mul_u32_u24 v6, {FH*2}, v6")
    a("v_lshl_add_u32 v6, v5, 1, v6")
    C1 = hex(f2u(0.044715))
    C2 = hex(f2u(-2.0 * 0.7978845608028654 * 1.4426950408889634))
    a(f"s_mov_b32 s12, {C1}")
    a(f"s_mov_b32 s13, {C2}")
    a("v_mov_b32 v9, -1")
    for c in range(3):
        a(f"v_add_u32 v7, {c*16}, v5")
        a(f"v_cmp_gt_u32 vcc, {FH}, v7")
        a(f"v_add_u32 v7, {c*32}, v6")
        a.nop(1)
        a(f"v_cndmask_b32 v{10+c}, v9, v7, vcc")
    for b in range(4):
        for c in range(3):
            d = ACC + 4*(b*3+c)
            T = 56
            for p in range(2):
                a(f"v_cvt_pk_bf16_f32 v{T}, v{d+2*p}, v{d+2*p+1}")
                a(f"v_lshlrev_b32 v{d+2*p}, 16, v{T}")
                a(f"v_and_b32 v{d+2*p+1}, 0xffff0000, v{T}")
            for e in range(4):
                y = d + e; t = T + 1 + e
                a(f"v_mul_f32 v{t}, v{y}, v{y}")
                a(f"v_mul_f32 v{t}, s12, v{t}")
                a(f"v_fma_f32 v{t}, v{t}, v{y}, v{y}")
                a(f"v_mul_f32 v{t}, s13, v{t}")
            for e in range(4):
                a(f"v_exp_f32 v{T+1+e}, v{T+1+e}")
            a.nop(1)
            for e in range(4):
                a(f"v_add_f32 v{T+1+e}, 1.0, v{T+1+e}")
            for e in range(4):
                a(f"v_rcp_f32 v{T+1+e}, v{T+1+e}")
            a.nop(1)
            for e in range(4):
                a(f"v_mul_f32 v{d+e}, v{d+e}, v{T+1+e}")
            a(f"v_cvt_pk_bf16_f32 v{d}, v{d}, v{d+1}")
            a(f"v_cvt_pk_bf16_f32 v{d+1}, v{d+2}, v{d+3}")
            a(f"s_mov_b32 s14, {b*16*FH*2}")
            a(f"buffer_store_dwordx2 {vr(d,2)}, v{10+c}, {sr(sZ,4)}, s14 offen")

CFG = {
    'qkv': dict(RM=80, TN=192, NST=4),
    'win': dict(RM=64, TN=192, NST=4),
    'res': dict(RM=64, TN=64, NST=6),
    'sp':  dict(RM=64, TN=96, NST=7),
}
def gemm_lds(mode):
    c = CFG[mode]
    return c['NST'] * (c['RM'] * 128 + 64 * c['TN'] * 2) + 1024

def gen_gemm(a, name, mode, nk, r_base, r_off, r_bytes, r_stride, t_base, t_bytes, t_stride,
             res_base=None, res_off=0, out_base=None, out_off=0):
    c_ = CFG[mode]
    RM, TN, NST = c_['RM'], c_['TN'], c_['NST']
    qkv, win, sp, res = mode == 'qkv', mode == 'win', mode == 'sp', mode == 'res'
    ln = qkv or win
    RS = TN * 2
    RB = RM * 128
    STG = RB + 64 * RS
    STATS = NST * STG
    NPT = TN // 32
    NPR = 3 if RM == 80 else 2
    NI = NPR + NPT
    NRB = RM // 16 if ln else 2
    NCB = 3 if (ln or sp) else 2
    kernel_begin(a, name, 256, wait=False)
    sR, sT, sX, sO, sZ, sB = 40, 44, 48, 52, 56, 72
    def srds(loader):
        a("s_waitcnt lgkmcnt(0)")
        if loader:
            srd(a, sR, r_base, r_off, r_bytes)
            if sp:
                srd(a, sT, P_WS, Z2N_OFF, 8 * S * 192)
            else:
                srd(a, sT, t_base, 0, t_bytes)
            return
        if sp:
            srd(a, sZ, P_WS, Z1_OFF, S * FH * 2)
            srd(a, sO, P_WS, U_OFF, S * UST * 2)
            srd(a, sB, P_BSP, 0, S * 2)
        if res:
            srd(a, sX, res_base, res_off, S * D * 2)
            srd(a, sO, out_base, out_off, S * D * 2)
        if qkv:
            srd(a, sO, P_WS, O_OFF, S * D * 2)
    if sp:
        a("s_and_b32 s4, s2, 31")
        a("s_lshr_b32 s5, s2, 5")
    else:
        a("s_lshr_b32 s4, s2, 3")
        a("s_and_b32 s5, s2, 7")
    a("s_lshl_b32 s6, s4, 6")
    a("s_mov_b32 s9, 0x3f803f80")
    if qkv:
        a("s_lshl_b32 s10, s5, 7")
    elif win:
        a("s_lshr_b32 s10, s5, 2")
        a("s_mul_i32 s10, s10, 1376")
        a("s_and_b32 s12, s5, 3")
        a("s_mul_i32 s12, s12, 384")
        a("s_add_u32 s10, s10, s12")
    else:
        a(f"s_mul_i32 s10, s5, {S*192 if sp else TN*2}")
    VRA = 14
    def r_frag_addrs(blk_expr):
        for ks in range(2):
            a(f"v_add_u32 v7, {4*ks}, v4")
            a("v_and_b32 v17, 7, v3")
            a("v_xor_b32 v7, v7, v17")
            a("v_lshlrev_b32 v7, 4, v7")
            a(f"v_lshl_add_u32 v{VRA+ks}, v3, 7, v7")
            if blk_expr:
                a(blk_expr.format(d=VRA+ks))
    a("s_cmp_eq_u32 s38, 0")
    a(f"s_cbranch_scc1 L_comp_{name}")
    a("s_lshl_b32 s14, s3, 11")
    a(f"s_mul_i32 s15, s3, {NPT*1024}")
    a(f"s_add_u32 s15, s15, {RB}")
    a("s_and_b32 s13, s3, 1")
    a("s_lshl_b32 s13, s13, 10")
    a("s_add_u32 s13, s13, 8192")
    VRG, VTG = 36, 40
    a("v_lshrrev_b32 v5, 3, v1")
    a("v_and_b32 v6, 7, v1")
    a("v_xor_b32 v6, v6, v5")
    a("v_lshl_add_u32 v7, v2, 4, v5")
    a("v_add_u32 v7, s6, v7")
    if qkv:
        a("v_subrev_u32 v7, 16, v7")
    a(f"s_mov_b32 s11, {r_stride}")
    a("v_mul_lo_u32 v7, v7, s11")
    a(f"v_lshl_add_u32 v{VRG}, v6, 4, v7")
    a(f"v_add_u32 v{VRG+1}, {8*r_stride}, v{VRG}")
    if NPR == 3:
        a("v_and_b32 v7, 1, v2")
        a("v_lshl_add_u32 v7, v7, 3, v5")
        a(f"v_add_u32 v7, {64-16}, v7")
        a("v_add_u32 v7, s6, v7")
        a("v_mul_lo_u32 v7, v7, s11")
        a(f"v_lshl_add_u32 v{VRG+2}, v6, 4, v7")
    t_dma_addrs(a, RS, NPT, t_stride, "s10", qkv, VTG)
    srds(True)
    def issue(kt):
        st = kt % NST
        a(f"s_mov_b32 s7, {kt*128}")
        a(f"s_mov_b32 s8, {kt*64*t_stride}")
        for j in range(NPT):
            dma(a, VTG+j, sT, "s8", 15, st*STG + j*1024)
        for j in range(2):
            dma(a, VRG+j, sR, "s7", 14, st*STG + j*1024)
        if NPR == 3:
            dma(a, VRG+2, sR, "s7", 13, st*STG)
    for kt in range(NST-1):
        issue(kt)
    vS, vQ, vT, vRS, vNM = 120, 121, 122, 124, 126
    vS4, vQ4 = 128, 129
    XF = 56
    def stats_step(kt):
        st = kt % NST
        a(f"v_add_u32 v5, {st*STG}, v{VRA}")
        a(f"v_add_u32 v6, {st*STG}, v{VRA+1}")
        a(f"ds_read_b128 {vr(XF,4)}, v5")
        a(f"ds_read_b128 {vr(XF+4,4)}, v6")
        if qkv:
            a("s_lshl_b32 s12, s3, 11")
            a(f"s_sub_u32 s12, {st*STG + 8192}, s12")
            a(f"v_add_u32 v5, s12, v{VRA}")
            a(f"v_add_u32 v6, s12, v{VRA+1}")
            a(f"ds_read_b128 {vr(XF+8,4)}, v5")
            a(f"ds_read_b128 {vr(XF+12,4)}, v6")
        a("s_waitcnt lgkmcnt(0)")
        for r in range(8):
            a(f"v_dot2_f32_bf16 v{vS}, v{XF+r}, s9, v{vS}")
            a(f"v_dot2_f32_bf16 v{vQ}, v{XF+r}, v{XF+r}, v{vQ}")
        if qkv:
            for r in range(8, 16):
                a(f"v_dot2_f32_bf16 v{vS4}, v{XF+r}, s9, v{vS4}")
                a(f"v_dot2_f32_bf16 v{vQ4}, v{XF+r}, v{XF+r}, v{vQ4}")
    def stats_fin(S_, Q_, blk4):
        a.nop(3)
        reduce4(a, S_, vT, "v_add_f32")
        reduce4(a, Q_, vT, "v_add_f32")
        ln_stats_finish(a, S_, Q_, vT, 512, vRS, vNM)
        a(f"v_mov_b32 v{vRS+1}, v{vNM}")
        if blk4:
            a("v_add_u32 v5, 64, v3")
        else:
            a("v_lshl_add_u32 v5, v2, 4, v3")
        a("v_lshlrev_b32 v5, 3, v5")
        a(f"v_add_u32 v5, {STATS}, v5")
        a(f"ds_write_b64 v5, v[{vRS}:{vRS+1}]")
    stamp(a, name, 1)
    for kt in range(nk):
        last_issued = min(kt + NST - 2, nk - 1)
        inflight = max(0, last_issued - min(kt + (1 if kt else 0), nk - 1))
        a(f"s_waitcnt vmcnt({NI*inflight})")
        a("s_barrier")
        stamp(a, name, 2+kt)
        if kt + NST - 1 < nk:
            issue(kt + NST - 1)
    stamp_flush(a, name)
    a("s_endpgm")
    a.label(f"L_comp_{name}")
    srds(False)
    EP = 40
    if res or sp:
        a("v_lshrrev_b32 v5, 1, v2")
        a("v_and_b32 v6, 1, v2")
        a("v_lshl_add_u32 v5, v5, 5, v3")
        a("v_add_u32 v5, s6, v5")
        a(f"s_mul_i32 s12, s5, {TN}")
        a(f"v_mul_u32_u24 v6, {NCB*16}, v6")
        a("v_lshl_add_u32 v6, v4, 2, v6")
        a("v_add_u32 v6, s12, v6")
    if res:
        a("v_lshlrev_b32 v20, 10, v5")
        a("v_lshl_add_u32 v20, v6, 1, v20")
        a(f"v_add_u32 v21, {16*1024}, v20")
        for b in range(2):
            for c in range(NCB):
                a(f"buffer_load_dwordx2 {vr(EP+2*(b*NCB+c),2)}, v{20+b}, {sr(sX,4)}, 0 offen offset:{c*32}")
    if sp:
        a(f"v_mul_u32_u24 v7, {FH*2}, v5")
        a("v_lshl_add_u32 v7, v6, 1, v7")
        a(f"v_mul_u32_u24 v9, {UST*2}, v5")
        a("v_lshl_add_u32 v9, v6, 1, v9")
        a("v_lshlrev_b32 v5, 1, v5")
        a("v_mov_b32 v17, -1")
        for c in range(NCB):
            a(f"v_add_u32 v18, {c*16}, v6")
            a(f"v_cmp_gt_u32 vcc, {FH}, v18")
            a(f"v_add_u32 v19, {c*32}, v7")
            a.nop(1)
            a(f"v_cndmask_b32 v{20+c}, v17, v19, vcc")
            a(f"v_cmp_gt_u32 vcc, {UST}, v18")
            a(f"v_add_u32 v19, {c*32}, v9")
            a.nop(1)
            a(f"v_cndmask_b32 v{24+c}, v17, v19, vcc")
        a(f"buffer_load_ushort v28, v5, {sr(sB,4)}, 0 offen")
        a(f"buffer_load_ushort v29, v5, {sr(sB,4)}, 0 offen offset:32")
        a(f"s_mov_b32 s12, {16*FH*2}")
        a(f"s_mov_b32 s13, {16*UST*2}")
        for b in range(2):
            for c in range(NCB):
                so = "s12" if b else "0"
                a(f"buffer_load_dwordx2 {vr(EP+2*(b*NCB+c),2)}, v{20+c}, {sr(sZ,4)}, {so} offen")
    VTA = 16
    if ln:
        r_frag_addrs(None)
    else:
        a("v_lshrrev_b32 v9, 1, v2")
        r_frag_addrs("v_lshl_add_u32 v{d}, v9, 12, v{d}")
    NTA = 1 if qkv else NCB
    for c in range(NTA):
        if qkv:
            a("v_mov_b32 v9, v2")
        elif win:
            a("v_mul_u32_u24 v9, 3, v2")
            a(f"v_add_u32 v9, {c}, v9")
        else:
            a("v_and_b32 v9, 1, v2")
            a(f"v_mul_u32_u24 v9, {NCB}, v9")
            a(f"v_add_u32 v9, {c}, v9")
        t_frag_addr(a, RS, VTA+c, 9, RB)
    AS = 212
    for st in range(1, NST):
        for ks in range(2):
            a(f"v_add_u32 v{AS+5*(st-1)+ks}, {STG*st}, v{VRA+ks}")
        for c in range(NTA):
            a(f"v_add_u32 v{AS+5*(st-1)+2+c}, {STG*st}, v{VTA+c}")
    ACC = 120
    NACC = 56 if qkv else NRB*NCB*4
    CS = ACC + NACC
    ONES = CS + 12
    for r in range(NACC + (12 if ln else 0)):
        a(f"v_mov_b32 v{ACC+r}, 0")
    if ln:
        for r in range(4):
            a(f"v_mov_b32 v{ONES+r}, s9")
    FR = [56, 88]
    SF = [196, 200]
    SA, QA = [32, 40], [36, 44]
    vT, vRS, vNM = 208, 52, 54
    if ln:
        for v in range(32, 48):
            a(f"v_mov_b32 v{v}, 0")
        a("v_lshlrev_b32 v30, 11, v2")
    def stat_fill(st):
        return []
    def stat_mfmas(st, a):
        if not ln: return
        O = vr(ONES, 4)
        X = vr(SF[st], 4)
        a(f"v_mfma_f32_16x16x32_bf16 {vr(SA[0],4)}, {O}, {X}, {vr(SA[0],4)}")
        a(f"v_mfma_f32_16x16x32_bf16 {vr(QA[0],4)}, {X}, {X}, {vr(QA[0],4)}")
        if qkv:
            X = vr(FR[st]+16, 4)
            a(f"v_mfma_f32_16x16x32_bf16 {vr(SA[1],4)}, {O}, {X}, {vr(SA[1],4)}")
            a(f"v_mfma_f32_16x16x32_bf16 {vr(QA[1],4)}, {X}, {X}, {vr(QA[1],4)}")
    def frag_reads(st_, ks, st):
        L = []
        base = FR[st]
        ra = (AS+5*(st_-1) if st_ else VRA) + ks
        ta = (AS+5*(st_-1)+2 if st_ else VTA)
        for c in range(3 if qkv else NCB):
            for h in range(2):
                off = ks*32*RS + h*4*RS + (c*128 if qkv else 0)
                L.append(f"ds_read_b64_tr_b16 {vr(base+20+4*c+2*h,2)}, v{ta + (0 if qkv else c)} offset:{off}")
        for b in range(NRB):
            L.append(f"ds_read_b128 {vr(base+4*b,4)}, v{ra} offset:{b*2048}")
        if ln:
            L.append(f"v_add_u32 v31, v30, v{ra}")
            L.append(f"ds_read_b128 {vr(SF[st],4)}, v31")
        return L
    nreads = NRB + 2*(3 if qkv else NCB)
    def mfmas(st, fill):
        M = []
        _mfmas(st, M.append)
        stat_mfmas(st, M.append)
        n, f = len(M), len(fill)
        k = 0
        for i, m in enumerate(M):
            a(m)
            tgt = min(f, 2 * (i + 1)) if i + 1 < n else f
            while k < tgt:
                a(fill[k]); k += 1
    def _mfmas(st, a):
        base = FR[st]
        R = lambda b: vr(base+4*b, 4)
        T = lambda c: vr(base+20+4*c, 4)
        O = vr(ONES, 4)
        if qkv:
            for c in range(2):
                a(f"v_mfma_f32_16x16x32_bf16 {vr(CS+4*c,4)}, {T(c)}, {O}, {vr(CS+4*c,4)}")
            a(f"v_mfma_f32_16x16x32_bf16 {vr(CS+8,4)}, {O}, {T(2)}, {vr(CS+8,4)}")
            for b in range(5):
                if b > 0:
                    q = ACC + 4*(b-1)
                    a(f"v_mfma_f32_16x16x32_bf16 {vr(q,4)}, {T(0)}, {R(b)}, {vr(q,4)}")
                kk = ACC + 16 + 4*b
                a(f"v_mfma_f32_16x16x32_bf16 {vr(kk,4)}, {T(1)}, {R(b)}, {vr(kk,4)}")
                vv = ACC + 36 + 4*b
                a(f"v_mfma_f32_16x16x32_bf16 {vr(vv,4)}, {R(b)}, {T(2)}, {vr(vv,4)}")
        else:
            if win:
                for c in range(3):
                    a(f"v_mfma_f32_16x16x32_bf16 {vr(CS+4*c,4)}, {T(c)}, {O}, {vr(CS+4*c,4)}")
            for b in range(NRB):
                for c in range(NCB):
                    d = ACC + 4*(b*NCB+c)
                    a(f"v_mfma_f32_16x16x32_bf16 {vr(d,4)}, {T(c)}, {R(b)}, {vr(d,4)}")
    stamp(a, name, 1)
    for kt in range(nk):
        a("s_barrier")
        stamp(a, name, 2+kt)
        if kt <= 1:
            for l in frag_reads(kt, 0, 0): a(l)
        a("s_waitcnt lgkmcnt(0)")
        mfmas(0, frag_reads(kt % NST, 1, 1) + stat_fill(0))
        a("s_waitcnt lgkmcnt(0)")
        mfmas(1, (frag_reads((kt+1) % NST, 0, 0) if 0 < kt < nk - 1 else []) + stat_fill(1))
    stamp(a, name, 40)
    if ln:
        a.nop(8)
        a("v_lshrrev_b32 v5, 2, v3")
        a("v_and_b32 v6, 3, v3")
        a("v_cmp_eq_u32 s[60:61], v5, v4")
        a("v_cmp_eq_u32 s[62:63], 1, v6")
        a("v_cmp_eq_u32 s[64:65], 2, v6")
        a("v_cmp_eq_u32 s[66:67], 3, v6")
        a.nop(2)
        def stats_fin(S_, Q_, blk4):
            a(f"v_cndmask_b32 v{Q_}, v{Q_}, v{Q_+1}, s[62:63]")
            a(f"v_cndmask_b32 v{Q_}, v{Q_}, v{Q_+2}, s[64:65]")
            a(f"v_cndmask_b32 v{Q_}, v{Q_}, v{Q_+3}, s[66:67]")
            a(f"v_cndmask_b32 v{Q_}, 0, v{Q_}, s[60:61]")
            reduce4(a, Q_, vT, "v_add_f32")
            ln_stats_finish(a, S_, Q_, vT, 512, vRS, vNM)
            a(f"v_mov_b32 v{vRS+1}, v{vNM}")
            if blk4:
                a("v_add_u32 v5, 64, v3")
            else:
                a("v_lshl_add_u32 v5, v2, 4, v3")
            a("v_lshlrev_b32 v5, 3, v5")
            a(f"v_add_u32 v5, {STATS}, v5")
            a(f"ds_write_b64 v5, v[{vRS}:{vRS+1}]")
        stats_fin(SA[0], QA[0], False)
        if qkv:
            stats_fin(SA[1], QA[1], True)
        a("s_waitcnt lgkmcnt(0)")
        a("s_barrier")
        ST = 56
        a("v_lshlrev_b32 v5, 3, v3")
        a("v_lshlrev_b32 v6, 5, v4")
        a(f"v_add_u32 v5, {STATS}, v5")
        a(f"v_add_u32 v6, {STATS}, v6")
        for b in range(NRB):
            a(f"ds_read_b64 {vr(ST+2*b,2)}, v5 offset:{b*128}")
        if qkv:
            for b in range(5):
                a(f"ds_read_b128 {vr(ST+12+8*b,4)}, v6 offset:{b*128}")
                a(f"ds_read_b128 {vr(ST+16+8*b,4)}, v6 offset:{b*128 + 16}")
        a("s_waitcnt lgkmcnt(0)")
        a.nop(6)
        if qkv:
            for b in range(5):
                for e in range(4):
                    if b > 0:
                        q = ACC + 4*(b-1) + e
                        a(f"v_mul_f32 v{q}, v{q}, v{ST+2*b}")
                        a(f"v_fmac_f32 v{q}, v{CS+e}, v{ST+2*b+1}")
                    kk = ACC + 16 + 4*b + e
                    a(f"v_mul_f32 v{kk}, v{kk}, v{ST+2*b}")
                    a(f"v_fmac_f32 v{kk}, v{CS+4+e}, v{ST+2*b+1}")
                    vv = ACC + 36 + 4*b + e
                    a(f"v_mul_f32 v{vv}, v{vv}, v{ST+12+8*b+2*e}")
                    a(f"v_fmac_f32 v{vv}, v{CS+8}, v{ST+12+8*b+2*e+1}")
            attn_epilogue(a, ACC, sO)
        else:
            for b in range(4):
                for c in range(3):
                    for e in range(4):
                        d = ACC + 4*(b*3+c) + e
                        a(f"v_mul_f32 v{d}, v{d}, v{ST+2*b}")
                        a(f"v_fmac_f32 v{d}, v{CS+4*c+e}, v{ST+2*b+1}")
            g3_epilogue(a, ACC)
    else:
        a("s_waitcnt vmcnt(0)")
        a.nop(10)
    if res:
        for b in range(2):
            for c in range(NCB):
                d = ACC + 4*(b*NCB+c); x = EP + 2*(b*NCB+c)
                T = 56
                for p in range(2):
                    a(f"v_cvt_pk_bf16_f32 v{T}, v{d+2*p}, v{d+2*p+1}")
                    a(f"v_lshlrev_b32 v{d+2*p}, 16, v{T}")
                    a(f"v_and_b32 v{d+2*p+1}, 0xffff0000, v{T}")
                    a(f"v_lshlrev_b32 v{T+1}, 16, v{x+p}")
                    a(f"v_and_b32 v{T+2}, 0xffff0000, v{x+p}")
                    a(f"v_add_f32 v{d+2*p}, v{d+2*p}, v{T+1}")
                    a(f"v_add_f32 v{d+2*p+1}, v{d+2*p+1}, v{T+2}")
                a(f"v_cvt_pk_bf16_f32 v{d}, v{d}, v{d+1}")
                a(f"v_cvt_pk_bf16_f32 v{d+1}, v{d+2}, v{d+3}")
                a(f"buffer_store_dwordx2 {vr(d,2)}, v{20+b}, {sr(sO,4)}, 0 offen offset:{c*32}")
    if sp:
        a("v_lshlrev_b32 v28, 16, v28")
        a("v_lshlrev_b32 v29, 16, v29")
        for b in range(2):
            for c in range(NCB):
                d = ACC + 4*(b*NCB+c); x = EP + 2*(b*NCB+c)
                T = 56
                for p in range(2):
                    a(f"v_cvt_pk_bf16_f32 v{T}, v{d+2*p}, v{d+2*p+1}")
                    a(f"v_lshlrev_b32 v{d+2*p}, 16, v{T}")
                    a(f"v_and_b32 v{d+2*p+1}, 0xffff0000, v{T}")
                    a(f"v_add_f32 v{d+2*p}, v{d+2*p}, v{28+b}")
                    a(f"v_add_f32 v{d+2*p+1}, v{d+2*p+1}, v{28+b}")
                    a(f"v_cvt_pk_bf16_f32 v{T}, v{d+2*p}, v{d+2*p+1}")
                    a(f"v_lshlrev_b32 v{d+2*p}, 16, v{T}")
                    a(f"v_and_b32 v{d+2*p+1}, 0xffff0000, v{T}")
                    a(f"v_lshlrev_b32 v{T+1}, 16, v{x+p}")
                    a(f"v_and_b32 v{T+2}, 0xffff0000, v{x+p}")
                    a(f"v_mul_f32 v{d+2*p}, v{d+2*p}, v{T+1}")
                    a(f"v_mul_f32 v{d+2*p+1}, v{d+2*p+1}, v{T+2}")
                a(f"v_cvt_pk_bf16_f32 v{d}, v{d}, v{d+1}")
                a(f"v_cvt_pk_bf16_f32 v{d+1}, v{d+2}, v{d+3}")
                so = "s13" if b else "0"
                a(f"buffer_store_dwordx2 {vr(d,2)}, v{24+c}, {sr(sO,4)}, {so} offen")
    stamp(a, name, 41)
    stamp_flush(a, name)
    kernel_end(a, name)
    return 256 if STAMP else 248

def gen_ln2(a, name):
    kernel_begin(a, name, 256)
    sI, sO = 40, 44
    srd(a, sI, P_WS, Z2_OFF, S * FH * 2)
    srd(a, sO, P_WS, Z2N_OFF, 8 * S * 192)
    a("s_mov_b32 s9, 0x3f803f80")
    a("s_lshl_b32 s4, s2, 2")
    a("s_add_u32 s4, s4, s3")
    a("s_lshl_b32 s4, s4, 1")
    a(f"s_mul_i32 s5, s4, {FH*2}")
    a("v_lshlrev_b32 v5, 4, v1")
    a("v_add_u32 v5, s5, v5")
    a("v_mov_b32 v7, -1")
    a("v_add_u32 v6, 1024, v5")
    a("v_cmp_gt_u32 s[50:51], 22, v1")
    a.nop(2)
    a("v_cndmask_b32 v6, v7, v6, s[50:51]")
    a(f"s_mov_b32 s6, {FH*2}")
    for j in range(2):
        so = "s6" if j else "0"
        a(f"buffer_load_dwordx4 {vr(16+8*j,4)}, v5, {sr(sI,4)}, {so} offen")
        a(f"buffer_load_dwordx4 {vr(20+8*j,4)}, v6, {sr(sI,4)}, {so} offen")
    a("s_mul_i32 s7, s4, 192")
    for g in range(2):
        a(f"v_add_u32 v8, {64*g}, v1")
        a("v_mul_u32_u24 v9, 5462, v8")
        a("v_lshrrev_b32 v9, 16, v9")
        a("v_mul_u32_u24 v10, 12, v9")
        a("v_sub_u32 v10, v8, v10")
        a(f"s_mov_b32 s11, {S*192}")
        a("v_mul_lo_u32 v9, v9, s11")
        a("v_lshl_add_u32 v9, v10, 4, v9")
        a(f"v_add_u32 v{12+g}, s7, v9")
    a("v_cmp_gt_u32 vcc, 32, v1")
    a.nop(2)
    a("v_cndmask_b32 v13, v7, v13, vcc")
    a("s_mov_b32 s8, 192")
    for j in range(2):
        X = 16 + 8*j
        vS, vQ, vT, vRS, vNM, vTL = 40, 41, 42, 44, 46, 48
        a(f"v_mov_b32 v{vS}, 0")
        a(f"v_mov_b32 v{vQ}, 0")
        a(f"s_waitcnt vmcnt({2-2*j})" if j == 0 else "s_waitcnt vmcnt(2)")
        for r in range(8):
            a(f"v_dot2_f32_bf16 v{vS}, v{X+r}, s9, v{vS}")
            a(f"v_dot2_f32_bf16 v{vQ}, v{X+r}, v{X+r}, v{vQ}")
        a.nop(3)
        for v in (vS, vQ):
            for dpp in ("quad_perm:[1,0,3,2]", "quad_perm:[2,3,0,1]", "row_half_mirror", "row_mirror"):
                a(f"v_add_f32_dpp v{v}, v{v}, v{v} {dpp} row_mask:0xf bank_mask:0xf")
                a.nop(2)
            reduce4(a, v, vT, "v_add_f32")
        ln_stats_finish(a, vS, vQ, vT, FH, vRS, vNM)
        for r in range(8):
            normalize_reg(a, X+r, vTL + 2*(r&1), vRS, vNM)
        for r in range(4, 8):
            a(f"v_cndmask_b32 v{X+r}, 0, v{X+r}, s[50:51]")
        so = "s8" if j else "0"
        a(f"buffer_store_dwordx4 {vr(X,4)}, v12, {sr(sO,4)}, {so} offen")
        a(f"buffer_store_dwordx4 {vr(X+4,4)}, v13, {sr(sO,4)}, {so} offen")
    kernel_end(a, name)
    return 64

def main():
    a = Asm()
    descs = []
    launches = []
    def add(name, vg, lds, blk=512):
        descs.append(kernel_desc(name, vg))
        launches.append(f"; @launch kernel={name} grid=(256,1,1) block=({blk},1,1) lds={lds}")
    for rnd in range(2):
        xin_base, xin_off = (P_X, 0) if rnd == 0 else (P_WS, X2_OFF)
        xo_base, xo_off = (P_WS, X2_OFF) if rnd == 0 else (P_OUT, 0)
        n = f"g1a{rnd}_kernel"
        vg = gen_gemm(a, n, 'qkv', 8, xin_base, xin_off, S*D*2, 1024, P_WQKV, 512*1536*2, 3072)
        add(n, vg, gemm_lds('qkv'))
        n = f"g2r{rnd}_kernel"
        vg = gen_gemm(a, n, 'res', 8, P_WS, O_OFF, S*D*2, 1024, P_WO, 512*512*2, 1024,
                      res_base=xin_base, res_off=xin_off, out_base=P_WS, out_off=X1_OFF)
        add(n, vg, gemm_lds('res'))
        if rnd == 0:
            n = "g3_kernel"
            vg = gen_gemm(a, n, 'win', 8, P_WS, X1_OFF, S*D*2, 1024, P_WIN, 512*1376*2, 2752)
            add(n, vg, gemm_lds('win'))
            n = "ln2_kernel"; vg = gen_ln2(a, n); add(n, vg, 0, 256)
            n = "g4_kernel"
            vg = gen_gemm(a, n, 'sp', 32, P_WSP, 0, S*S*2, 4096, None, 0, 192)
            add(n, vg, gemm_lds('sp'))
        else:
            launches.append(launches[2]); launches.append(launches[3]); launches.append(launches[4])
        n = f"g5r{rnd}_kernel"
        vg = gen_gemm(a, n, 'res', 11, P_WS, U_OFF, S*UST*2, UST*2, P_WOUT, FH*512*2, 1024,
                      res_base=P_WS, res_off=X1_OFF, out_base=xo_base, out_off=xo_off)
        add(n, vg, gemm_lds('res'))
    hdr = open(f"cdna_kernels/{NAME}.s.ref").read().split("\n")
    out = []
    for l in hdr:
        if l.startswith("; @launch"): break
        if "@launch" in l: continue
        out.append(l)
    out += launches
    out.append('.amdgcn_target "amdgcn-amd-amdhsa--gfx950"')
    out.append(".text")
    out += a.lines
    out.append('.section .rodata,"a"')
    for d in descs:
        out.append(".p2align 6")
        out.append(d)
    open(sys.argv[1] if len(sys.argv) > 1 else f"cdna_kernels/{NAME}.s", "w").write("\n".join(out) + "\n")

main()
```

```python
import struct, sys

NAME = "interleave_layers__sliding_local_dilated__mixer_gmlp__prompt"
MB = 1 << 20
O_OFF, X1_OFF, X2_OFF, Z1_OFF, Z2_OFF, Z2N_OFF, U_OFF = 0, 2*MB, 4*MB, 6*MB, 9*MB, 12*MB, 15*MB
S, D, FH, UST = 2048, 512, 688, 704

def f2u(f): return struct.unpack("<I", struct.pack("<f", f))[0]

import os
STAMP = os.environ.get("STAMP", "")
def stamp(a, name, idx):
    if STAMP != name: return
    a("s_memtime s[64:65]")
    a("s_waitcnt lgkmcnt(0)")
    a(f"v_writelane_b32 v250, s64, {idx}")
def stamp_flush(a, name):
    if STAMP != name: return
    a(f"s_add_u32 s64, s{P_WS}, {64*MB}")
    a(f"s_addc_u32 s65, s{P_WS+1}, 0")
    a(f"s_mov_b32 s66, {4*MB}")
    a("s_mov_b32 s67, 0x00020000")
    a("s_lshl_b32 s68, s2, 12")
    a("s_lshl_b32 s69, s39, 8")
    a("s_add_u32 s68, s68, s69")
    a("v_lshlrev_b32 v251, 2, v1")
    a("v_add_u32 v251, s68, v251")
    a("buffer_store_dword v250, v251, s[64:67], 0 offen")
    a("s_waitcnt vmcnt(0)")

class Asm:
    def __init__(self):
        self.lines = []
    def __call__(self, s):
        self.lines.append("    " + s)
    def label(self, l):
        self.lines.append(l + ":")
    def raw(self, s):
        self.lines.append(s)
    def nop(self, n):
        while n > 0:
            m = min(n, 16)
            self(f"s_nop {m-1}")
            n -= m

def vr(b, n):
    return f"v[{b}:{b+n-1}]" if n > 1 else f"v{b}"
def sr(b, n):
    return f"s[{b}:{b+n-1}]"

P_X, P_WQKV, P_WO, P_BX, P_WIN, P_WSP, P_BSP, P_WOUT, P_OUT, P_DBG, P_WS = 16, 18, 20, 22, 24, 26, 28, 30, 32, 34, 36

def kernel_begin(a, name, nwg, wait=True):
    a.raw(f".globl {name}")
    a.raw(".p2align 8")
    a.raw(f".type {name},@function")
    a.label(name)
    a(f"s_cmp_ge_u32 s2, {nwg}")
    a(f"s_cbranch_scc1 L_end_{name}")
    a("s_load_dwordx16 s[16:31], s[0:1], 0")
    a("s_load_dwordx4 s[32:35], s[0:1], 64")
    a("s_load_dwordx2 s[36:37], s[0:1], 80")
    a("v_and_b32 v1, 63, v0")
    a("v_lshrrev_b32 v5, 6, v0")
    a("v_bfe_u32 v2, v0, 6, 2")
    a("v_and_b32 v3, 15, v0")
    a("v_bfe_u32 v4, v0, 4, 2")
    a("v_readfirstlane_b32 s39, v5")
    a("s_and_b32 s3, s39, 3")
    a("s_lshr_b32 s38, s39, 2")
    if STAMP == name:
        a("v_mov_b32 v250, 0")
        a("s_memtime s[64:65]")
    if wait or STAMP == name:
        a("s_waitcnt lgkmcnt(0)")
    if STAMP == name:
        a("v_writelane_b32 v250, s64, 0")

def kernel_end(a, name):
    a.label(f"L_end_{name}")
    a("s_endpgm")

def kernel_desc(name, vgpr, sgpr=96):
    vg = (vgpr + 7) // 8 * 8
    return f""".amdhsa_kernel {name}
  .amdhsa_next_free_vgpr {vg}
  .amdhsa_next_free_sgpr {sgpr}
  .amdhsa_accum_offset {vg}
  .amdhsa_group_segment_fixed_size 0
  .amdhsa_kernarg_size 88
  .amdhsa_user_sgpr_count 2
  .amdhsa_user_sgpr_kernarg_segment_ptr 1
  .amdhsa_system_sgpr_workgroup_id_x 1
.end_amdhsa_kernel"""

def srd(a, d, base, off, nbytes):
    if off:
        a(f"s_add_u32 s{d}, s{base}, {off}")
        a(f"s_addc_u32 s{d+1}, s{base+1}, 0")
    else:
        a(f"s_mov_b32 s{d}, s{base}")
        a(f"s_mov_b32 s{d+1}, s{base+1}")
    a(f"s_mov_b32 s{d+2}, {nbytes}")
    a(f"s_mov_b32 s{d+3}, 0x00020000")

def reduce4(a, v, t, op):
    a(f"v_mov_b32 v{t}, v{v}")
    a.nop(2)
    a(f"v_permlane16_swap_b32 v{v}, v{t}")
    a.nop(1)
    a(f"{op} v{v}, v{v}, v{t}")
    a(f"v_mov_b32 v{t}, v{v}")
    a.nop(2)
    a(f"v_permlane32_swap_b32 v{v}, v{t}")
    a.nop(1)
    a(f"{op} v{v}, v{v}, v{t}")

def round_bf16(a, v, t):
    a(f"v_cvt_pk_bf16_f32 v{t}, v{v}, v{v}")
    a(f"v_lshlrev_b32 v{v}, 16, v{t}")

def ln_stats_finish(a, vS, vQ, t, n, vRS, vNM):
    a(f"v_mul_f32 v{vS}, {hex(f2u(1.0/n))}, v{vS}")
    a(f"v_mul_f32 v{vQ}, {hex(f2u(1.0/n))}, v{vQ}")
    a(f"v_fma_f32 v{vQ}, -v{vS}, v{vS}, v{vQ}")
    a(f"v_max_f32 v{vQ}, 0, v{vQ}")
    round_bf16(a, vS, t)
    round_bf16(a, vQ, t)
    a(f"v_add_f32 v{vQ}, {hex(f2u(1e-5))}, v{vQ}")
    round_bf16(a, vQ, t)
    a(f"v_sqrt_f32 v{vQ}, v{vQ}")
    a.nop(1)
    round_bf16(a, vQ, t)
    a(f"v_rcp_f32 v{vRS}, v{vQ}")
    a.nop(1)
    a(f"v_mov_b32 v{vRS+1}, v{vRS}")
    a(f"v_mul_f32 v{vNM}, v{vS}, v{vRS}")
    a(f"v_sub_f32 v{vNM}, 0, v{vNM}")
    a(f"v_mov_b32 v{vNM+1}, v{vNM}")

def normalize_reg(a, x, tl, vRS, vNM):
    a(f"v_lshlrev_b32 v{tl}, 16, v{x}")
    a(f"v_and_b32 v{tl+1}, 0xffff0000, v{x}")
    a(f"v_pk_fma_f32 v[{tl}:{tl+1}], v[{tl}:{tl+1}], v[{vRS}:{vRS+1}], v[{vNM}:{vNM+1}]")
    a(f"v_cvt_pk_bf16_f32 v{x}, v{tl}, v{tl+1}")


def t_g(a, RS, vk, vg, vt):
    if RS == 192:
        a(f"v_bfe_u32 v{vg}, v{vk}, 3, 1")
    else:
        a(f"v_bfe_u32 v{vg}, v{vk}, 1, 1")
        a(f"v_bfe_u32 v{vt}, v{vk}, 3, 1")
        a(f"v_lshl_or_b32 v{vg}, v{vt}, 1, v{vg}")

def t_dma_addrs(a, RS, NP, stride, s_colbase, qkv, vdst):
    cpr = RS // 16
    magic = {12: 5462, 24: 2731, 8: 8192}[cpr]
    a(f"v_mul_u32_u24 v5, {NP*64}, v2")
    a("v_add_u32 v5, v5, v1")
    a(f"s_mov_b32 s11, {stride}")
    for j in range(NP):
        a(f"v_add_u32 v6, {j*64}, v5")
        a(f"v_mul_u32_u24 v7, {magic}, v6")
        a("v_lshrrev_b32 v7, 16, v7")
        a(f"v_mul_u32_u24 v8, {cpr}, v7")
        a("v_sub_u32 v8, v6, v8")
        t_g(a, RS, 7, 9, 17)
        a("v_lshrrev_b32 v17, 1, v8")
        a("v_xor_b32 v9, v9, v17")
        a("v_and_b32 v8, 1, v8")
        a("v_mul_lo_u32 v7, v7, s11")
        a("v_lshl_add_u32 v7, v8, 4, v7")
        if qkv:
            a("v_lshrrev_b32 v17, 2, v9")
            a("v_lshl_add_u32 v7, v17, 10, v7")
            a("v_and_b32 v9, 3, v9")
        a("v_lshl_add_u32 v7, v9, 5, v7")
        a(f"v_add_u32 v{vdst+j}, {s_colbase}, v7")

def t_frag_addr(a, RS, vdst, vunit, base):
    a("v_lshrrev_b32 v5, 2, v3")
    a("v_lshl_add_u32 v5, v4, 3, v5")
    t_g(a, RS, 5, 6, 7)
    a(f"v_xor_b32 v6, v6, v{vunit}")
    a(f"v_mul_u32_u24 v5, {RS}, v5")
    a("v_lshl_add_u32 v5, v6, 5, v5")
    a("v_and_b32 v6, 3, v3")
    a("v_lshl_add_u32 v5, v6, 3, v5")
    a(f"v_add_u32 v{vdst}, {base}, v5")

def dma(a, voff, srd_, soff, sM, const):
    a(f"s_add_u32 m0, s{sM}, {const}")
    a("s_nop 0")
    a(f"buffer_load_dwordx4 v{voff}, {sr(srd_,4)}, {soff} offen lds")

TRS = 544

def attn_epilogue(a, ACC, sO):
    QF, KF, VF = 56, 64, 74
    for b in range(4):
        for h in range(2):
            a(f"v_cvt_pk_bf16_f32 v{QF+2*b+h}, v{ACC+4*b+2*h}, v{ACC+4*b+2*h+1}")
    for b in range(5):
        for h in range(2):
            a(f"v_cvt_pk_bf16_f32 v{KF+2*b+h}, v{ACC+16+4*b+2*h}, v{ACC+16+4*b+2*h+1}")
            a(f"v_cvt_pk_bf16_f32 v{VF+2*b+h}, v{ACC+36+4*b+2*h}, v{ACC+36+4*b+2*h+1}")
    a.nop(2)
    SCB = 120
    for j in range(4):
        a(f"v_mfma_f32_16x16x16_bf16 {vr(SCB+8*j,4)}, {vr(KF+2*j,2)}, {vr(QF+2*j,2)}, 0")
        a(f"v_mfma_f32_16x16x16_bf16 {vr(SCB+8*j+4,4)}, {vr(KF+2*(j+1),2)}, {vr(QF+2*j,2)}, 0")
    BI = 20
    NEG = hex(f2u(-1e9))
    a(f"v_mov_b32 v7, {NEG}")
    a("v_lshlrev_b32 v5, 2, v4")
    a("v_sub_u32 v5, v3, v5")
    for s_ in range(8):
        add = (16 if s_ < 4 else 0) - (s_ & 3)
        a(f"v_add_u32 v6, {add & 0xffffffff}, v5")
        a("v_and_b32 v8, 0xfffffff1, v6")
        a("v_cmp_eq_u32 vcc, 0, v8")
        a.nop(2)
        a(f"v_cndmask_b32 v{BI+s_}, v7, 0, vcc")
    a("s_cmp_eq_u32 s4, 0")
    a(f"s_cselect_b32 s12, {NEG}, 0")
    a("s_lshl_b32 s13, s5, 2")
    a("s_add_u32 s13, s13, s3")
    a("s_lshl_b32 s13, s13, 5")
    a("v_add_u32 v5, s6, v3")
    a("v_lshlrev_b32 v5, 10, v5")
    a("v_lshl_add_u32 v5, v4, 3, v5")
    a("v_add_u32 v28, s13, v5")
    SC = hex(f2u(0.25 * 1.4426950408889634))
    a(f"s_mov_b32 s14, {SC}")
    T0 = 88
    J = range(4)
    for p in range(4):
        for j in J:
            a(f"v_cvt_pk_bf16_f32 v{T0+8+j}, v{SCB+8*j+2*p}, v{SCB+8*j+2*p+1}")
        for j in J:
            a(f"v_lshlrev_b32 v{SCB+8*j+2*p}, 16, v{T0+8+j}")
            a(f"v_and_b32 v{SCB+8*j+2*p+1}, 0xffff0000, v{T0+8+j}")
    for s_ in range(8):
        for j in J:
            a(f"v_fma_f32 v{SCB+8*j+s_}, v{SCB+8*j+s_}, s14, v{BI+s_}")
    for s_ in range(4):
        a(f"v_add_f32 v{SCB+s_}, s12, v{SCB+s_}")
    for j in J:
        a(f"v_max3_f32 v{T0+j}, v{SCB+8*j}, v{SCB+8*j+1}, v{SCB+8*j+2}")
    for j in J:
        a(f"v_max3_f32 v{T0+j}, v{T0+j}, v{SCB+8*j+3}, v{SCB+8*j+4}")
    for j in J:
        a(f"v_max3_f32 v{T0+j}, v{T0+j}, v{SCB+8*j+5}, v{SCB+8*j+6}")
    for j in J:
        a(f"v_max_f32 v{T0+j}, v{T0+j}, v{SCB+8*j+7}")
    def red(op):
        for sw in ("v_permlane16_swap_b32", "v_permlane32_swap_b32"):
            for j in J:
                a(f"v_mov_b32 v{T0+4+j}, v{T0+j}")
            a.nop(1)
            for j in J:
                a(f"{sw} v{T0+j}, v{T0+4+j}")
            a.nop(1)
            for j in J:
                a(f"{op} v{T0+j}, v{T0+j}, v{T0+4+j}")
    red("v_max_f32")
    for s_ in range(8):
        for j in J:
            a(f"v_sub_f32 v{SCB+8*j+s_}, v{SCB+8*j+s_}, v{T0+j}")
    for s_ in range(8):
        for j in J:
            a(f"v_exp_f32 v{SCB+8*j+s_}, v{SCB+8*j+s_}")
    a.nop(1)
    for j in J:
        a(f"v_add_f32 v{T0+j}, v{SCB+8*j}, v{SCB+8*j+1}")
    for s_ in range(2, 8):
        for j in J:
            a(f"v_add_f32 v{T0+j}, v{T0+j}, v{SCB+8*j+s_}")
    red("v_add_f32")
    for j in J:
        a(f"v_rcp_f32 v{T0+j}, v{T0+j}")
    a.nop(1)
    for s_ in range(8):
        for j in J:
            a(f"v_mul_f32 v{SCB+8*j+s_}, v{SCB+8*j+s_}, v{T0+j}")
    PT = 96
    for p in range(4):
        for j in J:
            a(f"v_cvt_pk_bf16_f32 v{PT+4*j+p}, v{SCB+8*j+2*p}, v{SCB+8*j+2*p+1}")
    a.nop(2)
    OO = 152
    for j in J:
        a(f"v_mfma_f32_16x16x16_bf16 {vr(OO+4*j,4)}, {vr(VF+2*j,2)}, {vr(PT+4*j,2)}, 0")
    for j in J:
        a(f"v_mfma_f32_16x16x16_bf16 {vr(OO+4*j,4)}, {vr(VF+2*(j+1),2)}, {vr(PT+4*j+2,2)}, {vr(OO+4*j,4)}")
    a.nop(10)
    for j in J:
        a(f"v_cvt_pk_bf16_f32 v{T0+2*j}, v{OO+4*j}, v{OO+4*j+1}")
        a(f"v_cvt_pk_bf16_f32 v{T0+2*j+1}, v{OO+4*j+2}, v{OO+4*j+3}")
    for j in J:
        a(f"s_mov_b32 s13, {16*1024*j}")
        a(f"buffer_store_dwordx2 {vr(T0+2*j,2)}, v28, {sr(sO,4)}, s13 offen")

def g3_epilogue(a, ACC):
    sZ = 48
    a("s_lshr_b32 s12, s5, 2")
    a(f"s_mul_i32 s12, s12, {Z2_OFF - Z1_OFF}")
    a(f"s_add_u32 s12, s12, {Z1_OFF}")
    a(f"s_add_u32 s{sZ}, s{P_WS}, s12")
    a(f"s_addc_u32 s{sZ+1}, s{P_WS+1}, 0")
    a(f"s_mov_b32 s{sZ+2}, {S*FH*2}")
    a(f"s_mov_b32 s{sZ+3}, 0x00020000")
    a("s_and_b32 s13, s5, 3")
    a("s_mul_i32 s13, s13, 192")
    a("s_mul_i32 s14, s3, 48")
    a("s_add_u32 s13, s13, s14")
    a("v_lshlrev_b32 v5, 2, v4")
    a("v_add_u32 v5, s13, v5")
    a("v_add_u32 v6, s6, v3")
    a(f"v_mul_u32_u24 v6, {FH*2}, v6")
    a("v_lshl_add_u32 v6, v5, 1, v6")
    C1 = hex(f2u(0.044715))
    C2 = hex(f2u(-2.0 * 0.7978845608028654 * 1.4426950408889634))
    a(f"s_mov_b32 s12, {C1}")
    a(f"s_mov_b32 s13, {C2}")
    a("v_mov_b32 v9, -1")
    for c in range(3):
        a(f"v_add_u32 v7, {c*16}, v5")
        a(f"v_cmp_gt_u32 vcc, {FH}, v7")
        a(f"v_add_u32 v7, {c*32}, v6")
        a.nop(1)
        a(f"v_cndmask_b32 v{10+c}, v9, v7, vcc")
    for b in range(4):
        for c in range(3):
            d = ACC + 4*(b*3+c)
            T = 56
            for p in range(2):
                a(f"v_cvt_pk_bf16_f32 v{T}, v{d+2*p}, v{d+2*p+1}")
                a(f"v_lshlrev_b32 v{d+2*p}, 16, v{T}")
                a(f"v_and_b32 v{d+2*p+1}, 0xffff0000, v{T}")
            for e in range(4):
                y = d + e; t = T + 1 + e
                a(f"v_mul_f32 v{t}, v{y}, v{y}")
                a(f"v_mul_f32 v{t}, s12, v{t}")
                a(f"v_fma_f32 v{t}, v{t}, v{y}, v{y}")
                a(f"v_mul_f32 v{t}, s13, v{t}")
            for e in range(4):
                a(f"v_exp_f32 v{T+1+e}, v{T+1+e}")
            a.nop(1)
            for e in range(4):
                a(f"v_add_f32 v{T+1+e}, 1.0, v{T+1+e}")
            for e in range(4):
                a(f"v_rcp_f32 v{T+1+e}, v{T+1+e}")
            a.nop(1)
            for e in range(4):
                a(f"v_mul_f32 v{d+e}, v{d+e}, v{T+1+e}")
            a(f"v_cvt_pk_bf16_f32 v{d}, v{d}, v{d+1}")
            a(f"v_cvt_pk_bf16_f32 v{d+1}, v{d+2}, v{d+3}")
            a(f"s_mov_b32 s14, {b*16*FH*2}")
            a(f"buffer_store_dwordx2 {vr(d,2)}, v{10+c}, {sr(sZ,4)}, s14 offen")

CFG = {
    'qkv': dict(RM=80, TN=192, NST=4),
    'win': dict(RM=64, TN=192, NST=4),
    'res': dict(RM=64, TN=64, NST=6),
    'sp':  dict(RM=64, TN=96, NST=7),
}
def gemm_lds(mode):
    c = CFG[mode]
    return c['NST'] * (c['RM'] * 128 + 64 * c['TN'] * 2) + 1024

def gen_gemm(a, name, mode, nk, r_base, r_off, r_bytes, r_stride, t_base, t_bytes, t_stride,
             res_base=None, res_off=0, out_base=None, out_off=0):
    c_ = CFG[mode]
    RM, TN, NST = c_['RM'], c_['TN'], c_['NST']
    qkv, win, sp, res = mode == 'qkv', mode == 'win', mode == 'sp', mode == 'res'
    ln = qkv or win
    RS = TN * 2
    RB = RM * 128
    STG = RB + 64 * RS
    STATS = NST * STG
    NPT = TN // 32
    NPR = 3 if RM == 80 else 2
    NI = NPR + NPT
    NRB = RM // 16 if ln else 2
    NCB = 3 if (ln or sp) else 2
    kernel_begin(a, name, 256, wait=False)
    sR, sT, sX, sO, sZ, sB = 40, 44, 48, 52, 56, 72
    def srds(loader):
        a("s_waitcnt lgkmcnt(0)")
        if loader:
            srd(a, sR, r_base, r_off, r_bytes)
            if sp:
                srd(a, sT, P_WS, Z2N_OFF, 8 * S * 192)
            else:
                srd(a, sT, t_base, 0, t_bytes)
            return
        if sp:
            srd(a, sZ, P_WS, Z1_OFF, S * FH * 2)
            srd(a, sO, P_WS, U_OFF, S * UST * 2)
            srd(a, sB, P_BSP, 0, S * 2)
        if res:
            srd(a, sX, res_base, res_off, S * D * 2)
            srd(a, sO, out_base, out_off, S * D * 2)
        if qkv:
            srd(a, sO, P_WS, O_OFF, S * D * 2)
    if sp:
        a("s_and_b32 s4, s2, 31")
        a("s_lshr_b32 s5, s2, 5")
    else:
        a("s_lshr_b32 s4, s2, 3")
        a("s_and_b32 s5, s2, 7")
    a("s_lshl_b32 s6, s4, 6")
    a("s_mov_b32 s9, 0x3f803f80")
    if qkv:
        a("s_lshl_b32 s10, s5, 7")
    elif win:
        a("s_lshr_b32 s10, s5, 2")
        a("s_mul_i32 s10, s10, 1376")
        a("s_and_b32 s12, s5, 3")
        a("s_mul_i32 s12, s12, 384")
        a("s_add_u32 s10, s10, s12")
    else:
        a(f"s_mul_i32 s10, s5, {S*192 if sp else TN*2}")
    VRA = 14
    def r_frag_addrs(blk_expr):
        for ks in range(2):
            a(f"v_add_u32 v7, {4*ks}, v4")
            a("v_and_b32 v17, 7, v3")
            a("v_xor_b32 v7, v7, v17")
            a("v_lshlrev_b32 v7, 4, v7")
            a(f"v_lshl_add_u32 v{VRA+ks}, v3, 7, v7")
            if blk_expr:
                a(blk_expr.format(d=VRA+ks))
    a("s_cmp_eq_u32 s38, 0")
    a(f"s_cbranch_scc1 L_comp_{name}")
    a("s_lshl_b32 s14, s3, 11")
    a(f"s_mul_i32 s15, s3, {NPT*1024}")
    a(f"s_add_u32 s15, s15, {RB}")
    a("s_and_b32 s13, s3, 1")
    a("s_lshl_b32 s13, s13, 10")
    a("s_add_u32 s13, s13, 8192")
    VRG, VTG = 36, 40
    a("v_lshrrev_b32 v5, 3, v1")
    a("v_and_b32 v6, 7, v1")
    a("v_xor_b32 v6, v6, v5")
    a("v_lshl_add_u32 v7, v2, 4, v5")
    a("v_add_u32 v7, s6, v7")
    if qkv:
        a("v_subrev_u32 v7, 16, v7")
    a(f"s_mov_b32 s11, {r_stride}")
    a("v_mul_lo_u32 v7, v7, s11")
    a(f"v_lshl_add_u32 v{VRG}, v6, 4, v7")
    a(f"v_add_u32 v{VRG+1}, {8*r_stride}, v{VRG}")
    if NPR == 3:
        a("v_and_b32 v7, 1, v2")
        a("v_lshl_add_u32 v7, v7, 3, v5")
        a(f"v_add_u32 v7, {64-16}, v7")
        a("v_add_u32 v7, s6, v7")
        a("v_mul_lo_u32 v7, v7, s11")
        a(f"v_lshl_add_u32 v{VRG+2}, v6, 4, v7")
    t_dma_addrs(a, RS, NPT, t_stride, "s10", qkv, VTG)
    srds(True)
    def issue(kt):
        st = kt % NST
        a(f"s_mov_b32 s7, {kt*128}")
        a(f"s_mov_b32 s8, {kt*64*t_stride}")
        for j in range(NPT):
            dma(a, VTG+j, sT, "s8", 15, st*STG + j*1024)
        for j in range(2):
            dma(a, VRG+j, sR, "s7", 14, st*STG + j*1024)
        if NPR == 3:
            dma(a, VRG+2, sR, "s7", 13, st*STG)
    PRO = 2
    for kt in range(PRO):
        issue(kt)
    vS, vQ, vT, vRS, vNM = 120, 121, 122, 124, 126
    vS4, vQ4 = 128, 129
    XF = 56
    def stats_step(kt):
        st = kt % NST
        a(f"v_add_u32 v5, {st*STG}, v{VRA}")
        a(f"v_add_u32 v6, {st*STG}, v{VRA+1}")
        a(f"ds_read_b128 {vr(XF,4)}, v5")
        a(f"ds_read_b128 {vr(XF+4,4)}, v6")
        if qkv:
            a("s_lshl_b32 s12, s3, 11")
            a(f"s_sub_u32 s12, {st*STG + 8192}, s12")
            a(f"v_add_u32 v5, s12, v{VRA}")
            a(f"v_add_u32 v6, s12, v{VRA+1}")
            a(f"ds_read_b128 {vr(XF+8,4)}, v5")
            a(f"ds_read_b128 {vr(XF+12,4)}, v6")
        a("s_waitcnt lgkmcnt(0)")
        for r in range(8):
            a(f"v_dot2_f32_bf16 v{vS}, v{XF+r}, s9, v{vS}")
            a(f"v_dot2_f32_bf16 v{vQ}, v{XF+r}, v{XF+r}, v{vQ}")
        if qkv:
            for r in range(8, 16):
                a(f"v_dot2_f32_bf16 v{vS4}, v{XF+r}, s9, v{vS4}")
                a(f"v_dot2_f32_bf16 v{vQ4}, v{XF+r}, v{XF+r}, v{vQ4}")
    def stats_fin(S_, Q_, blk4):
        a.nop(3)
        reduce4(a, S_, vT, "v_add_f32")
        reduce4(a, Q_, vT, "v_add_f32")
        ln_stats_finish(a, S_, Q_, vT, 512, vRS, vNM)
        a(f"v_mov_b32 v{vRS+1}, v{vNM}")
        if blk4:
            a("v_add_u32 v5, 64, v3")
        else:
            a("v_lshl_add_u32 v5, v2, 4, v3")
        a("v_lshlrev_b32 v5, 3, v5")
        a(f"v_add_u32 v5, {STATS}, v5")
        a(f"ds_write_b64 v5, v[{vRS}:{vRS+1}]")
    stamp(a, name, 1)
    issued = PRO
    for kt in range(nk):
        need = min(kt + (1 if kt else 0), nk - 1)
        inflight = max(0, issued - 1 - need)
        a(f"s_waitcnt vmcnt({NI*inflight})")
        a("s_barrier")
        stamp(a, name, 2+kt)
        n_now = 0
        while issued < nk and issued <= kt + NST - 1 and n_now < 2:
            issue(issued); issued += 1; n_now += 1
    stamp_flush(a, name)
    a("s_endpgm")
    a.label(f"L_comp_{name}")
    srds(False)
    EP = 40
    if res or sp:
        a("v_lshrrev_b32 v5, 1, v2")
        a("v_and_b32 v6, 1, v2")
        a("v_lshl_add_u32 v5, v5, 5, v3")
        a("v_add_u32 v5, s6, v5")
        a(f"s_mul_i32 s12, s5, {TN}")
        a(f"v_mul_u32_u24 v6, {NCB*16}, v6")
        a("v_lshl_add_u32 v6, v4, 2, v6")
        a("v_add_u32 v6, s12, v6")
    if res:
        a("v_lshlrev_b32 v20, 10, v5")
        a("v_lshl_add_u32 v20, v6, 1, v20")
        a(f"v_add_u32 v21, {16*1024}, v20")
        for b in range(2):
            for c in range(NCB):
                a(f"buffer_load_dwordx2 {vr(EP+2*(b*NCB+c),2)}, v{20+b}, {sr(sX,4)}, 0 offen offset:{c*32}")
    if sp:
        a(f"v_mul_u32_u24 v7, {FH*2}, v5")
        a("v_lshl_add_u32 v7, v6, 1, v7")
        a(f"v_mul_u32_u24 v9, {UST*2}, v5")
        a("v_lshl_add_u32 v9, v6, 1, v9")
        a("v_lshlrev_b32 v5, 1, v5")
        a("v_mov_b32 v17, -1")
        for c in range(NCB):
            a(f"v_add_u32 v18, {c*16}, v6")
            a(f"v_cmp_gt_u32 vcc, {FH}, v18")
            a(f"v_add_u32 v19, {c*32}, v7")
            a.nop(1)
            a(f"v_cndmask_b32 v{20+c}, v17, v19, vcc")
            a(f"v_cmp_gt_u32 vcc, {UST}, v18")
            a(f"v_add_u32 v19, {c*32}, v9")
            a.nop(1)
            a(f"v_cndmask_b32 v{24+c}, v17, v19, vcc")
        a(f"buffer_load_ushort v28, v5, {sr(sB,4)}, 0 offen")
        a(f"buffer_load_ushort v29, v5, {sr(sB,4)}, 0 offen offset:32")
        a(f"s_mov_b32 s12, {16*FH*2}")
        a(f"s_mov_b32 s13, {16*UST*2}")
        for b in range(2):
            for c in range(NCB):
                so = "s12" if b else "0"
                a(f"buffer_load_dwordx2 {vr(EP+2*(b*NCB+c),2)}, v{20+c}, {sr(sZ,4)}, {so} offen")
    VTA = 16
    if ln:
        r_frag_addrs(None)
    else:
        a("v_lshrrev_b32 v9, 1, v2")
        r_frag_addrs("v_lshl_add_u32 v{d}, v9, 12, v{d}")
    NTA = 1 if qkv else NCB
    for c in range(NTA):
        if qkv:
            a("v_mov_b32 v9, v2")
        elif win:
            a("v_mul_u32_u24 v9, 3, v2")
            a(f"v_add_u32 v9, {c}, v9")
        else:
            a("v_and_b32 v9, 1, v2")
            a(f"v_mul_u32_u24 v9, {NCB}, v9")
            a(f"v_add_u32 v9, {c}, v9")
        t_frag_addr(a, RS, VTA+c, 9, RB)
    AS = 212
    for st in range(1, NST):
        for ks in range(2):
            a(f"v_add_u32 v{AS+5*(st-1)+ks}, {STG*st}, v{VRA+ks}")
        for c in range(NTA):
            a(f"v_add_u32 v{AS+5*(st-1)+2+c}, {STG*st}, v{VTA+c}")
    ACC = 120
    NACC = 56 if qkv else NRB*NCB*4
    CS = ACC + NACC
    ONES = CS + 12
    for r in range(NACC + (12 if ln else 0)):
        a(f"v_mov_b32 v{ACC+r}, 0")
    if ln:
        for r in range(4):
            a(f"v_mov_b32 v{ONES+r}, s9")
    FR = [56, 88]
    SF = [196, 200]
    SA, QA = [32, 40], [36, 44]
    vT, vRS, vNM = 208, 52, 54
    if ln:
        for v in range(32, 48):
            a(f"v_mov_b32 v{v}, 0")
        a("v_lshlrev_b32 v30, 11, v2")
    def stat_fill(st):
        return []
    def stat_mfmas(st, a):
        if not ln: return
        O = vr(ONES, 4)
        X = vr(SF[st], 4)
        a(f"v_mfma_f32_16x16x32_bf16 {vr(SA[0],4)}, {O}, {X}, {vr(SA[0],4)}")
        a(f"v_mfma_f32_16x16x32_bf16 {vr(QA[0],4)}, {X}, {X}, {vr(QA[0],4)}")
        if qkv:
            X = vr(FR[st]+16, 4)
            a(f"v_mfma_f32_16x16x32_bf16 {vr(SA[1],4)}, {O}, {X}, {vr(SA[1],4)}")
            a(f"v_mfma_f32_16x16x32_bf16 {vr(QA[1],4)}, {X}, {X}, {vr(QA[1],4)}")
    def frag_reads(st_, ks, st):
        L = []
        base = FR[st]
        ra = (AS+5*(st_-1) if st_ else VRA) + ks
        ta = (AS+5*(st_-1)+2 if st_ else VTA)
        for c in range(3 if qkv else NCB):
            for h in range(2):
                off = ks*32*RS + h*4*RS + (c*128 if qkv else 0)
                L.append(f"ds_read_b64_tr_b16 {vr(base+20+4*c+2*h,2)}, v{ta + (0 if qkv else c)} offset:{off}")
        for b in range(NRB):
            L.append(f"ds_read_b128 {vr(base+4*b,4)}, v{ra} offset:{b*2048}")
        if ln:
            L.append(f"v_add_u32 v31, v30, v{ra}")
            L.append(f"ds_read_b128 {vr(SF[st],4)}, v31")
        return L
    nreads = NRB + 2*(3 if qkv else NCB)
    def mfmas(st, fill):
        M = []
        _mfmas(st, M.append)
        stat_mfmas(st, M.append)
        n, f = len(M), len(fill)
        k = 0
        for i, m in enumerate(M):
            a(m)
            tgt = min(f, 2 * (i + 1)) if i + 1 < n else f
            while k < tgt:
                a(fill[k]); k += 1
    def _mfmas(st, a):
        base = FR[st]
        R = lambda b: vr(base+4*b, 4)
        T = lambda c: vr(base+20+4*c, 4)
        O = vr(ONES, 4)
        if qkv:
            for c in range(2):
                a(f"v_mfma_f32_16x16x32_bf16 {vr(CS+4*c,4)}, {T(c)}, {O}, {vr(CS+4*c,4)}")
            a(f"v_mfma_f32_16x16x32_bf16 {vr(CS+8,4)}, {O}, {T(2)}, {vr(CS+8,4)}")
            for b in range(5):
                if b > 0:
                    q = ACC + 4*(b-1)
                    a(f"v_mfma_f32_16x16x32_bf16 {vr(q,4)}, {T(0)}, {R(b)}, {vr(q,4)}")
                kk = ACC + 16 + 4*b
                a(f"v_mfma_f32_16x16x32_bf16 {vr(kk,4)}, {T(1)}, {R(b)}, {vr(kk,4)}")
                vv = ACC + 36 + 4*b
                a(f"v_mfma_f32_16x16x32_bf16 {vr(vv,4)}, {R(b)}, {T(2)}, {vr(vv,4)}")
        else:
            if win:
                for c in range(3):
                    a(f"v_mfma_f32_16x16x32_bf16 {vr(CS+4*c,4)}, {T(c)}, {O}, {vr(CS+4*c,4)}")
            for b in range(NRB):
                for c in range(NCB):
                    d = ACC + 4*(b*NCB+c)
                    a(f"v_mfma_f32_16x16x32_bf16 {vr(d,4)}, {T(c)}, {R(b)}, {vr(d,4)}")
    stamp(a, name, 1)
    for kt in range(nk):
        a("s_barrier")
        stamp(a, name, 2+kt)
        if kt <= 1:
            for l in frag_reads(kt, 0, 0): a(l)
        a("s_waitcnt lgkmcnt(0)")
        mfmas(0, frag_reads(kt % NST, 1, 1) + stat_fill(0))
        a("s_waitcnt lgkmcnt(0)")
        mfmas(1, (frag_reads((kt+1) % NST, 0, 0) if 0 < kt < nk - 1 else []) + stat_fill(1))
    stamp(a, name, 40)
    if ln:
        a.nop(8)
        a("v_lshrrev_b32 v5, 2, v3")
        a("v_and_b32 v6, 3, v3")
        a("v_cmp_eq_u32 s[60:61], v5, v4")
        a("v_cmp_eq_u32 s[62:63], 1, v6")
        a("v_cmp_eq_u32 s[64:65], 2, v6")
        a("v_cmp_eq_u32 s[66:67], 3, v6")
        a.nop(2)
        def stats_fin(S_, Q_, blk4):
            a(f"v_cndmask_b32 v{Q_}, v{Q_}, v{Q_+1}, s[62:63]")
            a(f"v_cndmask_b32 v{Q_}, v{Q_}, v{Q_+2}, s[64:65]")
            a(f"v_cndmask_b32 v{Q_}, v{Q_}, v{Q_+3}, s[66:67]")
            a(f"v_cndmask_b32 v{Q_}, 0, v{Q_}, s[60:61]")
            reduce4(a, Q_, vT, "v_add_f32")
            ln_stats_finish(a, S_, Q_, vT, 512, vRS, vNM)
            a(f"v_mov_b32 v{vRS+1}, v{vNM}")
            if blk4:
                a("v_add_u32 v5, 64, v3")
            else:
                a("v_lshl_add_u32 v5, v2, 4, v3")
            a("v_lshlrev_b32 v5, 3, v5")
            a(f"v_add_u32 v5, {STATS}, v5")
            a(f"ds_write_b64 v5, v[{vRS}:{vRS+1}]")
        stats_fin(SA[0], QA[0], False)
        if qkv:
            stats_fin(SA[1], QA[1], True)
        a("s_waitcnt lgkmcnt(0)")
        a("s_barrier")
        ST = 56
        a("v_lshlrev_b32 v5, 3, v3")
        a("v_lshlrev_b32 v6, 5, v4")
        a(f"v_add_u32 v5, {STATS}, v5")
        a(f"v_add_u32 v6, {STATS}, v6")
        for b in range(NRB):
            a(f"ds_read_b64 {vr(ST+2*b,2)}, v5 offset:{b*128}")
        if qkv:
            for b in range(5):
                a(f"ds_read_b128 {vr(ST+12+8*b,4)}, v6 offset:{b*128}")
                a(f"ds_read_b128 {vr(ST+16+8*b,4)}, v6 offset:{b*128 + 16}")
        a("s_waitcnt lgkmcnt(0)")
        a.nop(6)
        if qkv:
            for b in range(5):
                for e in range(4):
                    if b > 0:
                        q = ACC + 4*(b-1) + e
                        a(f"v_mul_f32 v{q}, v{q}, v{ST+2*b}")
                        a(f"v_fmac_f32 v{q}, v{CS+e}, v{ST+2*b+1}")
                    kk = ACC + 16 + 4*b + e
                    a(f"v_mul_f32 v{kk}, v{kk}, v{ST+2*b}")
                    a(f"v_fmac_f32 v{kk}, v{CS+4+e}, v{ST+2*b+1}")
                    vv = ACC + 36 + 4*b + e
                    a(f"v_mul_f32 v{vv}, v{vv}, v{ST+12+8*b+2*e}")
                    a(f"v_fmac_f32 v{vv}, v{CS+8}, v{ST+12+8*b+2*e+1}")
            attn_epilogue(a, ACC, sO)
        else:
            for b in range(4):
                for c in range(3):
                    for e in range(4):
                        d = ACC + 4*(b*3+c) + e
                        a(f"v_mul_f32 v{d}, v{d}, v{ST+2*b}")
                        a(f"v_fmac_f32 v{d}, v{CS+4*c+e}, v{ST+2*b+1}")
            g3_epilogue(a, ACC)
    else:
        a("s_waitcnt vmcnt(0)")
        a.nop(10)
    if res:
        for b in range(2):
            for c in range(NCB):
                d = ACC + 4*(b*NCB+c); x = EP + 2*(b*NCB+c)
                T = 56
                for p in range(2):
                    a(f"v_cvt_pk_bf16_f32 v{T}, v{d+2*p}, v{d+2*p+1}")
                    a(f"v_lshlrev_b32 v{d+2*p}, 16, v{T}")
                    a(f"v_and_b32 v{d+2*p+1}, 0xffff0000, v{T}")
                    a(f"v_lshlrev_b32 v{T+1}, 16, v{x+p}")
                    a(f"v_and_b32 v{T+2}, 0xffff0000, v{x+p}")
                    a(f"v_add_f32 v{d+2*p}, v{d+2*p}, v{T+1}")
                    a(f"v_add_f32 v{d+2*p+1}, v{d+2*p+1}, v{T+2}")
                a(f"v_cvt_pk_bf16_f32 v{d}, v{d}, v{d+1}")
                a(f"v_cvt_pk_bf16_f32 v{d+1}, v{d+2}, v{d+3}")
                a(f"buffer_store_dwordx2 {vr(d,2)}, v{20+b}, {sr(sO,4)}, 0 offen offset:{c*32}")
    if sp:
        a("v_lshlrev_b32 v28, 16, v28")
        a("v_lshlrev_b32 v29, 16, v29")
        for b in range(2):
            for c in range(NCB):
                d = ACC + 4*(b*NCB+c); x = EP + 2*(b*NCB+c)
                T = 56
                for p in range(2):
                    a(f"v_cvt_pk_bf16_f32 v{T}, v{d+2*p}, v{d+2*p+1}")
                    a(f"v_lshlrev_b32 v{d+2*p}, 16, v{T}")
                    a(f"v_and_b32 v{d+2*p+1}, 0xffff0000, v{T}")
                    a(f"v_add_f32 v{d+2*p}, v{d+2*p}, v{28+b}")
                    a(f"v_add_f32 v{d+2*p+1}, v{d+2*p+1}, v{28+b}")
                    a(f"v_cvt_pk_bf16_f32 v{T}, v{d+2*p}, v{d+2*p+1}")
                    a(f"v_lshlrev_b32 v{d+2*p}, 16, v{T}")
                    a(f"v_and_b32 v{d+2*p+1}, 0xffff0000, v{T}")
                    a(f"v_lshlrev_b32 v{T+1}, 16, v{x+p}")
                    a(f"v_and_b32 v{T+2}, 0xffff0000, v{x+p}")
                    a(f"v_mul_f32 v{d+2*p}, v{d+2*p}, v{T+1}")
                    a(f"v_mul_f32 v{d+2*p+1}, v{d+2*p+1}, v{T+2}")
                a(f"v_cvt_pk_bf16_f32 v{d}, v{d}, v{d+1}")
                a(f"v_cvt_pk_bf16_f32 v{d+1}, v{d+2}, v{d+3}")
                so = "s13" if b else "0"
                a(f"buffer_store_dwordx2 {vr(d,2)}, v{24+c}, {sr(sO,4)}, {so} offen")
    stamp(a, name, 41)
    stamp_flush(a, name)
    kernel_end(a, name)
    return 256 if STAMP else 248

def gen_ln2(a, name):
    kernel_begin(a, name, 256)
    sI, sO = 40, 44
    srd(a, sI, P_WS, Z2_OFF, S * FH * 2)
    srd(a, sO, P_WS, Z2N_OFF, 8 * S * 192)
    a("s_mov_b32 s9, 0x3f803f80")
    a("s_lshl_b32 s4, s2, 2")
    a("s_add_u32 s4, s4, s3")
    a("s_lshl_b32 s4, s4, 1")
    a(f"s_mul_i32 s5, s4, {FH*2}")
    a("v_lshlrev_b32 v5, 4, v1")
    a("v_add_u32 v5, s5, v5")
    a("v_mov_b32 v7, -1")
    a("v_add_u32 v6, 1024, v5")
    a("v_cmp_gt_u32 s[50:51], 22, v1")
    a.nop(2)
    a("v_cndmask_b32 v6, v7, v6, s[50:51]")
    a(f"s_mov_b32 s6, {FH*2}")
    for j in range(2):
        so = "s6" if j else "0"
        a(f"buffer_load_dwordx4 {vr(16+8*j,4)}, v5, {sr(sI,4)}, {so} offen")
        a(f"buffer_load_dwordx4 {vr(20+8*j,4)}, v6, {sr(sI,4)}, {so} offen")
    a("s_mul_i32 s7, s4, 192")
    for g in range(2):
        a(f"v_add_u32 v8, {64*g}, v1")
        a("v_mul_u32_u24 v9, 5462, v8")
        a("v_lshrrev_b32 v9, 16, v9")
        a("v_mul_u32_u24 v10, 12, v9")
        a("v_sub_u32 v10, v8, v10")
        a(f"s_mov_b32 s11, {S*192}")
        a("v_mul_lo_u32 v9, v9, s11")
        a("v_lshl_add_u32 v9, v10, 4, v9")
        a(f"v_add_u32 v{12+g}, s7, v9")
    a("v_cmp_gt_u32 vcc, 32, v1")
    a.nop(2)
    a("v_cndmask_b32 v13, v7, v13, vcc")
    a("s_mov_b32 s8, 192")
    for j in range(2):
        X = 16 + 8*j
        vS, vQ, vT, vRS, vNM, vTL = 40, 41, 42, 44, 46, 48
        a(f"v_mov_b32 v{vS}, 0")
        a(f"v_mov_b32 v{vQ}, 0")
        a(f"s_waitcnt vmcnt({2-2*j})" if j == 0 else "s_waitcnt vmcnt(2)")
        for r in range(8):
            a(f"v_dot2_f32_bf16 v{vS}, v{X+r}, s9, v{vS}")
            a(f"v_dot2_f32_bf16 v{vQ}, v{X+r}, v{X+r}, v{vQ}")
        a.nop(3)
        for v in (vS, vQ):
            for dpp in ("quad_perm:[1,0,3,2]", "quad_perm:[2,3,0,1]", "row_half_mirror", "row_mirror"):
                a(f"v_add_f32_dpp v{v}, v{v}, v{v} {dpp} row_mask:0xf bank_mask:0xf")
                a.nop(2)
            reduce4(a, v, vT, "v_add_f32")
        ln_stats_finish(a, vS, vQ, vT, FH, vRS, vNM)
        for r in range(8):
            normalize_reg(a, X+r, vTL + 2*(r&1), vRS, vNM)
        for r in range(4, 8):
            a(f"v_cndmask_b32 v{X+r}, 0, v{X+r}, s[50:51]")
        so = "s8" if j else "0"
        a(f"buffer_store_dwordx4 {vr(X,4)}, v12, {sr(sO,4)}, {so} offen")
        a(f"buffer_store_dwordx4 {vr(X+4,4)}, v13, {sr(sO,4)}, {so} offen")
    kernel_end(a, name)
    return 64

def main():
    a = Asm()
    descs = []
    launches = []
    def add(name, vg, lds, blk=512):
        descs.append(kernel_desc(name, vg))
        launches.append(f"; @launch kernel={name} grid=(256,1,1) block=({blk},1,1) lds={lds}")
    for rnd in range(2):
        xin_base, xin_off = (P_X, 0) if rnd == 0 else (P_WS, X2_OFF)
        xo_base, xo_off = (P_WS, X2_OFF) if rnd == 0 else (P_OUT, 0)
        n = f"g1a{rnd}_kernel"
        vg = gen_gemm(a, n, 'qkv', 8, xin_base, xin_off, S*D*2, 1024, P_WQKV, 512*1536*2, 3072)
        add(n, vg, gemm_lds('qkv'))
        n = f"g2r{rnd}_kernel"
        vg = gen_gemm(a, n, 'res', 8, P_WS, O_OFF, S*D*2, 1024, P_WO, 512*512*2, 1024,
                      res_base=xin_base, res_off=xin_off, out_base=P_WS, out_off=X1_OFF)
        add(n, vg, gemm_lds('res'))
        if rnd == 0:
            n = "g3_kernel"
            vg = gen_gemm(a, n, 'win', 8, P_WS, X1_OFF, S*D*2, 1024, P_WIN, 512*1376*2, 2752)
            add(n, vg, gemm_lds('win'))
            n = "ln2_kernel"; vg = gen_ln2(a, n); add(n, vg, 0, 256)
            n = "g4_kernel"
            vg = gen_gemm(a, n, 'sp', 32, P_WSP, 0, S*S*2, 4096, None, 0, 192)
            add(n, vg, gemm_lds('sp'))
        else:
            launches.append(launches[2]); launches.append(launches[3]); launches.append(launches[4])
        n = f"g5r{rnd}_kernel"
        vg = gen_gemm(a, n, 'res', 11, P_WS, U_OFF, S*UST*2, UST*2, P_WOUT, FH*512*2, 1024,
                      res_base=P_WS, res_off=X1_OFF, out_base=xo_base, out_off=xo_off)
        add(n, vg, gemm_lds('res'))
    hdr = open(f"cdna_kernels/{NAME}.s.ref").read().split("\n")
    out = []
    for l in hdr:
        if l.startswith("; @launch"): break
        if "@launch" in l: continue
        out.append(l)
    out += launches
    out.append('.amdgcn_target "amdgcn-amd-amdhsa--gfx950"')
    out.append(".text")
    out += a.lines
    out.append('.section .rodata,"a"')
    for d in descs:
        out.append(".p2align 6")
        out.append(d)
    open(sys.argv[1] if len(sys.argv) > 1 else f"cdna_kernels/{NAME}.s", "w").write("\n".join(out) + "\n")

main()
```

```python
import struct, sys

NAME = "interleave_layers__sliding_local_dilated__mixer_gmlp__prompt"
MB = 1 << 20
O_OFF, X1_OFF, X2_OFF, Z1_OFF, Z2_OFF, Z2N_OFF, U_OFF = 0, 2*MB, 4*MB, 6*MB, 9*MB, 12*MB, 15*MB
S, D, FH, UST = 2048, 512, 688, 704

def f2u(f): return struct.unpack("<I", struct.pack("<f", f))[0]

import os
STAMP = os.environ.get("STAMP", "")
def stamp(a, name, idx):
    if STAMP != name: return
    a("s_memtime s[64:65]")
    a("s_waitcnt lgkmcnt(0)")
    a(f"v_writelane_b32 v250, s64, {idx}")
def stamp_flush(a, name):
    if STAMP != name: return
    a(f"s_add_u32 s64, s{P_WS}, {64*MB}")
    a(f"s_addc_u32 s65, s{P_WS+1}, 0")
    a(f"s_mov_b32 s66, {4*MB}")
    a("s_mov_b32 s67, 0x00020000")
    a("s_lshl_b32 s68, s2, 12")
    a("s_lshl_b32 s69, s39, 8")
    a("s_add_u32 s68, s68, s69")
    a("v_lshlrev_b32 v251, 2, v1")
    a("v_add_u32 v251, s68, v251")
    a("buffer_store_dword v250, v251, s[64:67], 0 offen")
    a("s_waitcnt vmcnt(0)")

class Asm:
    def __init__(self):
        self.lines = []
    def __call__(self, s):
        self.lines.append("    " + s)
    def label(self, l):
        self.lines.append(l + ":")
    def raw(self, s):
        self.lines.append(s)
    def nop(self, n):
        while n > 0:
            m = min(n, 16)
            self(f"s_nop {m-1}")
            n -= m

def vr(b, n):
    return f"v[{b}:{b+n-1}]" if n > 1 else f"v{b}"
def sr(b, n):
    return f"s[{b}:{b+n-1}]"

P_X, P_WQKV, P_WO, P_BX, P_WIN, P_WSP, P_BSP, P_WOUT, P_OUT, P_DBG, P_WS = 16, 18, 20, 22, 24, 26, 28, 30, 32, 34, 36

def kernel_begin(a, name, nwg, wait=True):
    a.raw(f".globl {name}")
    a.raw(".p2align 8")
    a.raw(f".type {name},@function")
    a.label(name)
    a(f"s_cmp_ge_u32 s2, {nwg}")
    a(f"s_cbranch_scc1 L_end_{name}")
    a("s_load_dwordx16 s[16:31], s[0:1], 0")
    a("s_load_dwordx4 s[32:35], s[0:1], 64")
    a("s_load_dwordx2 s[36:37], s[0:1], 80")
    a("v_and_b32 v1, 63, v0")
    a("v_lshrrev_b32 v5, 6, v0")
    a("v_bfe_u32 v2, v0, 6, 2")
    a("v_and_b32 v3, 15, v0")
    a("v_bfe_u32 v4, v0, 4, 2")
    a("v_readfirstlane_b32 s39, v5")
    a("s_and_b32 s3, s39, 3")
    a("s_lshr_b32 s38, s39, 2")
    if STAMP == name:
        a("v_mov_b32 v250, 0")
        a("s_memtime s[64:65]")
    if wait or STAMP == name:
        a("s_waitcnt lgkmcnt(0)")
    if STAMP == name:
        a("v_writelane_b32 v250, s64, 0")

def kernel_end(a, name):
    a.label(f"L_end_{name}")
    a("s_endpgm")

def kernel_desc(name, vgpr, sgpr=96):
    vg = (vgpr + 7) // 8 * 8
    return f""".amdhsa_kernel {name}
  .amdhsa_next_free_vgpr {vg}
  .amdhsa_next_free_sgpr {sgpr}
  .amdhsa_accum_offset {vg}
  .amdhsa_group_segment_fixed_size 0
  .amdhsa_kernarg_size 88
  .amdhsa_user_sgpr_count 2
  .amdhsa_user_sgpr_kernarg_segment_ptr 1
  .amdhsa_system_sgpr_workgroup_id_x 1
.end_amdhsa_kernel"""

def srd(a, d, base, off, nbytes):
    if off:
        a(f"s_add_u32 s{d}, s{base}, {off}")
        a(f"s_addc_u32 s{d+1}, s{base+1}, 0")
    else:
        a(f"s_mov_b32 s{d}, s{base}")
        a(f"s_mov_b32 s{d+1}, s{base+1}")
    a(f"s_mov_b32 s{d+2}, {nbytes}")
    a(f"s_mov_b32 s{d+3}, 0x00020000")

def reduce4(a, v, t, op):
    a(f"v_mov_b32 v{t}, v{v}")
    a.nop(2)
    a(f"v_permlane16_swap_b32 v{v}, v{t}")
    a.nop(1)
    a(f"{op} v{v}, v{v}, v{t}")
    a(f"v_mov_b32 v{t}, v{v}")
    a.nop(2)
    a(f"v_permlane32_swap_b32 v{v}, v{t}")
    a.nop(1)
    a(f"{op} v{v}, v{v}, v{t}")

def round_bf16(a, v, t):
    a(f"v_cvt_pk_bf16_f32 v{t}, v{v}, v{v}")
    a(f"v_lshlrev_b32 v{v}, 16, v{t}")

def ln_stats_finish(a, vS, vQ, t, n, vRS, vNM):
    a(f"v_mul_f32 v{vS}, {hex(f2u(1.0/n))}, v{vS}")
    a(f"v_mul_f32 v{vQ}, {hex(f2u(1.0/n))}, v{vQ}")
    a(f"v_fma_f32 v{vQ}, -v{vS}, v{vS}, v{vQ}")
    a(f"v_max_f32 v{vQ}, 0, v{vQ}")
    round_bf16(a, vS, t)
    round_bf16(a, vQ, t)
    a(f"v_add_f32 v{vQ}, {hex(f2u(1e-5))}, v{vQ}")
    round_bf16(a, vQ, t)
    a(f"v_sqrt_f32 v{vQ}, v{vQ}")
    a.nop(1)
    round_bf16(a, vQ, t)
    a(f"v_rcp_f32 v{vRS}, v{vQ}")
    a.nop(1)
    a(f"v_mov_b32 v{vRS+1}, v{vRS}")
    a(f"v_mul_f32 v{vNM}, v{vS}, v{vRS}")
    a(f"v_sub_f32 v{vNM}, 0, v{vNM}")
    a(f"v_mov_b32 v{vNM+1}, v{vNM}")

def normalize_reg(a, x, tl, vRS, vNM):
    a(f"v_lshlrev_b32 v{tl}, 16, v{x}")
    a(f"v_and_b32 v{tl+1}, 0xffff0000, v{x}")
    a(f"v_pk_fma_f32 v[{tl}:{tl+1}], v[{tl}:{tl+1}], v[{vRS}:{vRS+1}], v[{vNM}:{vNM+1}]")
    a(f"v_cvt_pk_bf16_f32 v{x}, v{tl}, v{tl+1}")


def t_g(a, RS, vk, vg, vt):
    if RS == 192:
        a(f"v_bfe_u32 v{vg}, v{vk}, 3, 1")
    else:
        a(f"v_bfe_u32 v{vg}, v{vk}, 1, 1")
        a(f"v_bfe_u32 v{vt}, v{vk}, 3, 1")
        a(f"v_lshl_or_b32 v{vg}, v{vt}, 1, v{vg}")

def t_dma_addrs(a, RS, NP, stride, s_colbase, qkv, vdst):
    cpr = RS // 16
    magic = {12: 5462, 24: 2731, 8: 8192}[cpr]
    a(f"v_mul_u32_u24 v5, {NP*64}, v2")
    a("v_add_u32 v5, v5, v1")
    a(f"s_mov_b32 s11, {stride}")
    for j in range(NP):
        a(f"v_add_u32 v6, {j*64}, v5")
        a(f"v_mul_u32_u24 v7, {magic}, v6")
        a("v_lshrrev_b32 v7, 16, v7")
        a(f"v_mul_u32_u24 v8, {cpr}, v7")
        a("v_sub_u32 v8, v6, v8")
        t_g(a, RS, 7, 9, 17)
        a("v_lshrrev_b32 v17, 1, v8")
        a("v_xor_b32 v9, v9, v17")
        a("v_and_b32 v8, 1, v8")
        a("v_mul_lo_u32 v7, v7, s11")
        a("v_lshl_add_u32 v7, v8, 4, v7")
        if qkv:
            a("v_lshrrev_b32 v17, 2, v9")
            a("v_lshl_add_u32 v7, v17, 10, v7")
            a("v_and_b32 v9, 3, v9")
        a("v_lshl_add_u32 v7, v9, 5, v7")
        a(f"v_add_u32 v{vdst+j}, {s_colbase}, v7")

def t_frag_addr(a, RS, vdst, vunit, base):
    a("v_lshrrev_b32 v5, 2, v3")
    a("v_lshl_add_u32 v5, v4, 3, v5")
    t_g(a, RS, 5, 6, 7)
    a(f"v_xor_b32 v6, v6, v{vunit}")
    a(f"v_mul_u32_u24 v5, {RS}, v5")
    a("v_lshl_add_u32 v5, v6, 5, v5")
    a("v_and_b32 v6, 3, v3")
    a("v_lshl_add_u32 v5, v6, 3, v5")
    a(f"v_add_u32 v{vdst}, {base}, v5")

def dma(a, voff, srd_, soff, sM, const):
    a(f"s_add_u32 m0, s{sM}, {const}")
    a("s_nop 0")
    a(f"buffer_load_dwordx4 v{voff}, {sr(srd_,4)}, {soff} offen lds")

TRS = 544

def attn_epilogue(a, ACC, sO):
    QF, KF, VF = 56, 64, 74
    for b in range(4):
        for h in range(2):
            a(f"v_cvt_pk_bf16_f32 v{QF+2*b+h}, v{ACC+4*b+2*h}, v{ACC+4*b+2*h+1}")
    for b in range(5):
        for h in range(2):
            a(f"v_cvt_pk_bf16_f32 v{KF+2*b+h}, v{ACC+16+4*b+2*h}, v{ACC+16+4*b+2*h+1}")
            a(f"v_cvt_pk_bf16_f32 v{VF+2*b+h}, v{ACC+36+4*b+2*h}, v{ACC+36+4*b+2*h+1}")
    a.nop(2)
    SCB = 120
    for j in range(4):
        a(f"v_mfma_f32_16x16x16_bf16 {vr(SCB+8*j,4)}, {vr(KF+2*j,2)}, {vr(QF+2*j,2)}, 0")
        a(f"v_mfma_f32_16x16x16_bf16 {vr(SCB+8*j+4,4)}, {vr(KF+2*(j+1),2)}, {vr(QF+2*j,2)}, 0")
    BI = 20
    NEG = hex(f2u(-1e9))
    a(f"v_mov_b32 v7, {NEG}")
    a("v_lshlrev_b32 v5, 2, v4")
    a("v_sub_u32 v5, v3, v5")
    for s_ in range(8):
        add = (16 if s_ < 4 else 0) - (s_ & 3)
        a(f"v_add_u32 v6, {add & 0xffffffff}, v5")
        a("v_and_b32 v8, 0xfffffff1, v6")
        a("v_cmp_eq_u32 vcc, 0, v8")
        a.nop(2)
        a(f"v_cndmask_b32 v{BI+s_}, v7, 0, vcc")
    a("s_cmp_eq_u32 s4, 0")
    a(f"s_cselect_b32 s12, {NEG}, 0")
    a("s_lshl_b32 s13, s5, 2")
    a("s_add_u32 s13, s13, s3")
    a("s_lshl_b32 s13, s13, 5")
    a("v_add_u32 v5, s6, v3")
    a("v_lshlrev_b32 v5, 10, v5")
    a("v_lshl_add_u32 v5, v4, 3, v5")
    a("v_add_u32 v28, s13, v5")
    SC = hex(f2u(0.25 * 1.4426950408889634))
    a(f"s_mov_b32 s14, {SC}")
    T0 = 88
    J = range(4)
    for p in range(4):
        for j in J:
            a(f"v_cvt_pk_bf16_f32 v{T0+8+j}, v{SCB+8*j+2*p}, v{SCB+8*j+2*p+1}")
        for j in J:
            a(f"v_lshlrev_b32 v{SCB+8*j+2*p}, 16, v{T0+8+j}")
            a(f"v_and_b32 v{SCB+8*j+2*p+1}, 0xffff0000, v{T0+8+j}")
    for s_ in range(8):
        for j in J:
            a(f"v_fma_f32 v{SCB+8*j+s_}, v{SCB+8*j+s_}, s14, v{BI+s_}")
    for s_ in range(4):
        a(f"v_add_f32 v{SCB+s_}, s12, v{SCB+s_}")
    for j in J:
        a(f"v_max3_f32 v{T0+j}, v{SCB+8*j}, v{SCB+8*j+1}, v{SCB+8*j+2}")
    for j in J:
        a(f"v_max3_f32 v{T0+j}, v{T0+j}, v{SCB+8*j+3}, v{SCB+8*j+4}")
    for j in J:
        a(f"v_max3_f32 v{T0+j}, v{T0+j}, v{SCB+8*j+5}, v{SCB+8*j+6}")
    for j in J:
        a(f"v_max_f32 v{T0+j}, v{T0+j}, v{SCB+8*j+7}")
    def red(op):
        for sw in ("v_permlane16_swap_b32", "v_permlane32_swap_b32"):
            for j in J:
                a(f"v_mov_b32 v{T0+4+j}, v{T0+j}")
            a.nop(1)
            for j in J:
                a(f"{sw} v{T0+j}, v{T0+4+j}")
            a.nop(1)
            for j in J:
                a(f"{op} v{T0+j}, v{T0+j}, v{T0+4+j}")
    red("v_max_f32")
    for s_ in range(8):
        for j in J:
            a(f"v_sub_f32 v{SCB+8*j+s_}, v{SCB+8*j+s_}, v{T0+j}")
    for s_ in range(8):
        for j in J:
            a(f"v_exp_f32 v{SCB+8*j+s_}, v{SCB+8*j+s_}")
    a.nop(1)
    for j in J:
        a(f"v_add_f32 v{T0+j}, v{SCB+8*j}, v{SCB+8*j+1}")
    for s_ in range(2, 8):
        for j in J:
            a(f"v_add_f32 v{T0+j}, v{T0+j}, v{SCB+8*j+s_}")
    red("v_add_f32")
    for j in J:
        a(f"v_rcp_f32 v{T0+j}, v{T0+j}")
    a.nop(1)
    for s_ in range(8):
        for j in J:
            a(f"v_mul_f32 v{SCB+8*j+s_}, v{SCB+8*j+s_}, v{T0+j}")
    PT = 96
    for p in range(4):
        for j in J:
            a(f"v_cvt_pk_bf16_f32 v{PT+4*j+p}, v{SCB+8*j+2*p}, v{SCB+8*j+2*p+1}")
    a.nop(2)
    OO = 152
    for j in J:
        a(f"v_mfma_f32_16x16x16_bf16 {vr(OO+4*j,4)}, {vr(VF+2*j,2)}, {vr(PT+4*j,2)}, 0")
    for j in J:
        a(f"v_mfma_f32_16x16x16_bf16 {vr(OO+4*j,4)}, {vr(VF+2*(j+1),2)}, {vr(PT+4*j+2,2)}, {vr(OO+4*j,4)}")
    a.nop(10)
    for j in J:
        a(f"v_cvt_pk_bf16_f32 v{T0+2*j}, v{OO+4*j}, v{OO+4*j+1}")
        a(f"v_cvt_pk_bf16_f32 v{T0+2*j+1}, v{OO+4*j+2}, v{OO+4*j+3}")
    for j in J:
        a(f"s_mov_b32 s13, {16*1024*j}")
        a(f"buffer_store_dwordx2 {vr(T0+2*j,2)}, v28, {sr(sO,4)}, s13 offen")

def g3_epilogue(a, ACC, blocks=(0, 1, 2, 3)):
    sZ = 48
    a("s_lshr_b32 s12, s5, 2")
    a(f"s_mul_i32 s12, s12, {Z2_OFF - Z1_OFF}")
    a(f"s_add_u32 s12, s12, {Z1_OFF}")
    a(f"s_add_u32 s{sZ}, s{P_WS}, s12")
    a(f"s_addc_u32 s{sZ+1}, s{P_WS+1}, 0")
    a(f"s_mov_b32 s{sZ+2}, {S*FH*2}")
    a(f"s_mov_b32 s{sZ+3}, 0x00020000")
    a("s_and_b32 s13, s5, 3")
    a("s_mul_i32 s13, s13, 192")
    a("s_mul_i32 s14, s3, 48")
    a("s_add_u32 s13, s13, s14")
    a("v_lshlrev_b32 v5, 2, v4")
    a("v_add_u32 v5, s13, v5")
    a("v_add_u32 v6, s6, v3")
    a(f"v_mul_u32_u24 v6, {FH*2}, v6")
    a("v_lshl_add_u32 v6, v5, 1, v6")
    C1 = hex(f2u(0.044715))
    C2 = hex(f2u(-2.0 * 0.7978845608028654 * 1.4426950408889634))
    a(f"s_mov_b32 s12, {C1}")
    a(f"s_mov_b32 s13, {C2}")
    a("v_mov_b32 v9, -1")
    for c in range(3):
        a(f"v_add_u32 v7, {c*16}, v5")
        a(f"v_cmp_gt_u32 vcc, {FH}, v7")
        a(f"v_add_u32 v7, {c*32}, v6")
        a.nop(1)
        a(f"v_cndmask_b32 v{10+c}, v9, v7, vcc")
    for b in blocks:
        for c in range(3):
            d = ACC + 4*(b*3+c)
            T = 56
            for p in range(2):
                a(f"v_cvt_pk_bf16_f32 v{T}, v{d+2*p}, v{d+2*p+1}")
                a(f"v_lshlrev_b32 v{d+2*p}, 16, v{T}")
                a(f"v_and_b32 v{d+2*p+1}, 0xffff0000, v{T}")
            for e in range(4):
                y = d + e; t = T + 1 + e
                a(f"v_mul_f32 v{t}, v{y}, v{y}")
                a(f"v_mul_f32 v{t}, s12, v{t}")
                a(f"v_fma_f32 v{t}, v{t}, v{y}, v{y}")
                a(f"v_mul_f32 v{t}, s13, v{t}")
            for e in range(4):
                a(f"v_exp_f32 v{T+1+e}, v{T+1+e}")
            a.nop(1)
            for e in range(4):
                a(f"v_add_f32 v{T+1+e}, 1.0, v{T+1+e}")
            for e in range(4):
                a(f"v_rcp_f32 v{T+1+e}, v{T+1+e}")
            a.nop(1)
            for e in range(4):
                a(f"v_mul_f32 v{d+e}, v{d+e}, v{T+1+e}")
            a(f"v_cvt_pk_bf16_f32 v{d}, v{d}, v{d+1}")
            a(f"v_cvt_pk_bf16_f32 v{d+1}, v{d+2}, v{d+3}")
            a(f"s_mov_b32 s14, {b*16*FH*2}")
            a(f"buffer_store_dwordx2 {vr(d,2)}, v{10+c}, {sr(sZ,4)}, s14 offen")

CFG = {
    'qkv': dict(RM=80, TN=192, NST=4),
    'win': dict(RM=64, TN=192, NST=4),
    'res': dict(RM=64, TN=64, NST=6),
    'sp':  dict(RM=64, TN=96, NST=7),
}
def gemm_lds(mode):
    c = CFG[mode]
    return c['NST'] * (c['RM'] * 128 + 64 * c['TN'] * 2) + 1024

def gen_gemm(a, name, mode, nk, r_base, r_off, r_bytes, r_stride, t_base, t_bytes, t_stride,
             res_base=None, res_off=0, out_base=None, out_off=0, prefetch=None):
    c_ = CFG[mode]
    RM, TN, NST = c_['RM'], c_['TN'], c_['NST']
    qkv, win, sp, res = mode == 'qkv', mode == 'win', mode == 'sp', mode == 'res'
    ln = qkv or win
    RS = TN * 2
    RB = RM * 128
    STG = RB + 64 * RS
    STATS = NST * STG
    NPT = TN // 32
    NPR = 3 if RM == 80 else 2
    NI = NPR + NPT
    NRB = RM // 16 if ln else 2
    NCB = 3 if (ln or sp) else 2
    kernel_begin(a, name, 256, wait=False)
    sR, sT, sX, sO, sZ, sB = 40, 44, 48, 52, 56, 72
    def srds(loader):
        a("s_waitcnt lgkmcnt(0)")
        if loader:
            srd(a, sR, r_base, r_off, r_bytes)
            if sp:
                srd(a, sT, P_WS, Z2N_OFF, 8 * S * 192)
            else:
                srd(a, sT, t_base, 0, t_bytes)
            return
        if sp:
            srd(a, sZ, P_WS, Z1_OFF, S * FH * 2)
            srd(a, sO, P_WS, U_OFF, S * UST * 2)
            srd(a, sB, P_BSP, 0, S * 2)
        if res:
            srd(a, sX, res_base, res_off, S * D * 2)
            srd(a, sO, out_base, out_off, S * D * 2)
        if qkv:
            srd(a, sO, P_WS, O_OFF, S * D * 2)
    if True:
        a("s_and_b32 s4, s2, 3")
        a("s_lshl_b32 s4, s4, 3")
        a("s_bfe_u32 s12, s2, 0x30003")
        a("s_add_u32 s4, s4, s12")
        a("s_bfe_u32 s5, s2, 0x10002")
        a("s_lshl_b32 s5, s5, 2")
        a("s_lshr_b32 s12, s2, 6")
        a("s_add_u32 s5, s5, s12")
    else:
        a("s_lshr_b32 s4, s2, 3")
        a("s_and_b32 s5, s2, 7")
    a("s_lshl_b32 s6, s4, 6")
    a("s_mov_b32 s9, 0x3f803f80")
    if qkv:
        a("s_lshl_b32 s10, s5, 7")
    elif win:
        a("s_lshr_b32 s10, s5, 2")
        a("s_mul_i32 s10, s10, 1376")
        a("s_and_b32 s12, s5, 3")
        a("s_mul_i32 s12, s12, 384")
        a("s_add_u32 s10, s10, s12")
    else:
        a(f"s_mul_i32 s10, s5, {S*192 if sp else TN*2}")
    VRA = 14
    def r_frag_addrs(blk_expr):
        for ks in range(2):
            a(f"v_add_u32 v7, {4*ks}, v4")
            a("v_and_b32 v17, 7, v3")
            a("v_xor_b32 v7, v7, v17")
            a("v_lshlrev_b32 v7, 4, v7")
            a(f"v_lshl_add_u32 v{VRA+ks}, v3, 7, v7")
            if blk_expr:
                a(blk_expr.format(d=VRA+ks))
    a("s_cmp_eq_u32 s38, 0")
    a(f"s_cbranch_scc1 L_comp_{name}")
    a("s_lshl_b32 s14, s3, 11")
    a(f"s_mul_i32 s15, s3, {NPT*1024}")
    a(f"s_add_u32 s15, s15, {RB}")
    a("s_and_b32 s13, s3, 1")
    a("s_lshl_b32 s13, s13, 10")
    a("s_add_u32 s13, s13, 8192")
    VRG, VTG = 36, 40
    a("v_lshrrev_b32 v5, 3, v1")
    a("v_and_b32 v6, 7, v1")
    a("v_xor_b32 v6, v6, v5")
    a("v_lshl_add_u32 v7, v2, 4, v5")
    a("v_add_u32 v7, s6, v7")
    if qkv:
        a("v_subrev_u32 v7, 16, v7")
    a(f"s_mov_b32 s11, {r_stride}")
    a("v_mul_lo_u32 v7, v7, s11")
    a(f"v_lshl_add_u32 v{VRG}, v6, 4, v7")
    a(f"v_add_u32 v{VRG+1}, {8*r_stride}, v{VRG}")
    if NPR == 3:
        a("v_and_b32 v7, 1, v2")
        a("v_lshl_add_u32 v7, v7, 3, v5")
        a(f"v_add_u32 v7, {64-16}, v7")
        a("v_add_u32 v7, s6, v7")
        a("v_mul_lo_u32 v7, v7, s11")
        a(f"v_lshl_add_u32 v{VRG+2}, v6, 4, v7")
    t_dma_addrs(a, RS, NPT, t_stride, "s10", qkv, VTG)
    srds(True)
    def issue(kt):
        st = kt % NST
        a(f"s_mov_b32 s7, {kt*128}")
        a(f"s_mov_b32 s8, {kt*64*t_stride}")
        for j in range(NPT):
            dma(a, VTG+j, sT, "s8", 15, st*STG + j*1024)
        for j in range(2):
            dma(a, VRG+j, sR, "s7", 14, st*STG + j*1024)
        if NPR == 3:
            dma(a, VRG+2, sR, "s7", 13, st*STG)
    PRO = 2
    for kt in range(PRO):
        issue(kt)
    vS, vQ, vT, vRS, vNM = 120, 121, 122, 124, 126
    vS4, vQ4 = 128, 129
    XF = 56
    def stats_step(kt):
        st = kt % NST
        a(f"v_add_u32 v5, {st*STG}, v{VRA}")
        a(f"v_add_u32 v6, {st*STG}, v{VRA+1}")
        a(f"ds_read_b128 {vr(XF,4)}, v5")
        a(f"ds_read_b128 {vr(XF+4,4)}, v6")
        if qkv:
            a("s_lshl_b32 s12, s3, 11")
            a(f"s_sub_u32 s12, {st*STG + 8192}, s12")
            a(f"v_add_u32 v5, s12, v{VRA}")
            a(f"v_add_u32 v6, s12, v{VRA+1}")
            a(f"ds_read_b128 {vr(XF+8,4)}, v5")
            a(f"ds_read_b128 {vr(XF+12,4)}, v6")
        a("s_waitcnt lgkmcnt(0)")
        for r in range(8):
            a(f"v_dot2_f32_bf16 v{vS}, v{XF+r}, s9, v{vS}")
            a(f"v_dot2_f32_bf16 v{vQ}, v{XF+r}, v{XF+r}, v{vQ}")
        if qkv:
            for r in range(8, 16):
                a(f"v_dot2_f32_bf16 v{vS4}, v{XF+r}, s9, v{vS4}")
                a(f"v_dot2_f32_bf16 v{vQ4}, v{XF+r}, v{XF+r}, v{vQ4}")
    def stats_fin(S_, Q_, blk4):
        a.nop(3)
        reduce4(a, S_, vT, "v_add_f32")
        reduce4(a, Q_, vT, "v_add_f32")
        ln_stats_finish(a, S_, Q_, vT, 512, vRS, vNM)
        a(f"v_mov_b32 v{vRS+1}, v{vNM}")
        if blk4:
            a("v_add_u32 v5, 64, v3")
        else:
            a("v_lshl_add_u32 v5, v2, 4, v3")
        a("v_lshlrev_b32 v5, 3, v5")
        a(f"v_add_u32 v5, {STATS}, v5")
        a(f"ds_write_b64 v5, v[{vRS}:{vRS+1}]")
    stamp(a, name, 1)
    issued = PRO
    for kt in range(nk):
        need = min(kt + (1 if kt else 0), nk - 1)
        inflight = max(0, issued - 1 - need)
        a(f"s_waitcnt vmcnt({NI*inflight})")
        a("s_barrier")
        stamp(a, name, 2+kt)
        n_now = 0
        while issued < nk and issued <= kt + NST - 1 and n_now < 2:
            issue(issued); issued += 1; n_now += 1
    stamp_flush(a, name)
    a("s_endpgm")
    a.label(f"L_comp_{name}")
    srds(False)
    if prefetch:
        a("v_and_b32 v5, 255, v0")
        a("v_lshlrev_b32 v5, 4, v5")
        for base, nbytes in prefetch:
            per = -(-nbytes // (256 * 4096))
            srd(a, 76, base, 0, nbytes)
            a(f"s_mul_i32 s12, s2, {per*4096}")
            a("v_add_u32 v6, s12, v5")
            for j in range(per):
                a(f"s_mov_b32 s13, {j*4096}")
                a(f"buffer_load_dwordx4 v[252:255], v6, s[76:79], s13 offen")
    EP = 40
    if res or sp:
        a("v_lshrrev_b32 v5, 1, v2")
        a("v_and_b32 v6, 1, v2")
        a("v_lshl_add_u32 v5, v5, 5, v3")
        a("v_add_u32 v5, s6, v5")
        a(f"s_mul_i32 s12, s5, {TN}")
        a(f"v_mul_u32_u24 v6, {NCB*16}, v6")
        a("v_lshl_add_u32 v6, v4, 2, v6")
        a("v_add_u32 v6, s12, v6")
    if res:
        a("v_lshlrev_b32 v20, 10, v5")
        a("v_lshl_add_u32 v20, v6, 1, v20")
        a(f"v_add_u32 v21, {16*1024}, v20")
        for b in range(2):
            for c in range(NCB):
                a(f"buffer_load_dwordx2 {vr(EP+2*(b*NCB+c),2)}, v{20+b}, {sr(sX,4)}, 0 offen offset:{c*32}")
    if sp:
        a(f"v_mul_u32_u24 v7, {FH*2}, v5")
        a("v_lshl_add_u32 v7, v6, 1, v7")
        a(f"v_mul_u32_u24 v9, {UST*2}, v5")
        a("v_lshl_add_u32 v9, v6, 1, v9")
        a("v_lshlrev_b32 v5, 1, v5")
        a("v_mov_b32 v17, -1")
        for c in range(NCB):
            a(f"v_add_u32 v18, {c*16}, v6")
            a(f"v_cmp_gt_u32 vcc, {FH}, v18")
            a(f"v_add_u32 v19, {c*32}, v7")
            a.nop(1)
            a(f"v_cndmask_b32 v{20+c}, v17, v19, vcc")
            a(f"v_cmp_gt_u32 vcc, {UST}, v18")
            a(f"v_add_u32 v19, {c*32}, v9")
            a.nop(1)
            a(f"v_cndmask_b32 v{24+c}, v17, v19, vcc")
        a(f"buffer_load_ushort v28, v5, {sr(sB,4)}, 0 offen")
        a(f"buffer_load_ushort v29, v5, {sr(sB,4)}, 0 offen offset:32")
        a(f"s_mov_b32 s12, {16*FH*2}")
        a(f"s_mov_b32 s13, {16*UST*2}")
        for b in range(2):
            for c in range(NCB):
                so = "s12" if b else "0"
                a(f"buffer_load_dwordx2 {vr(EP+2*(b*NCB+c),2)}, v{20+c}, {sr(sZ,4)}, {so} offen")
    VTA = 16
    if ln:
        r_frag_addrs(None)
    else:
        a("v_lshrrev_b32 v9, 1, v2")
        r_frag_addrs("v_lshl_add_u32 v{d}, v9, 12, v{d}")
    NTA = 1 if qkv else NCB
    for c in range(NTA):
        if qkv:
            a("v_mov_b32 v9, v2")
        elif win:
            a("v_mul_u32_u24 v9, 3, v2")
            a(f"v_add_u32 v9, {c}, v9")
        else:
            a("v_and_b32 v9, 1, v2")
            a(f"v_mul_u32_u24 v9, {NCB}, v9")
            a(f"v_add_u32 v9, {c}, v9")
        t_frag_addr(a, RS, VTA+c, 9, RB)
    AS = 212
    for st in range(1, NST):
        for ks in range(2):
            a(f"v_add_u32 v{AS+5*(st-1)+ks}, {STG*st}, v{VRA+ks}")
        for c in range(NTA):
            a(f"v_add_u32 v{AS+5*(st-1)+2+c}, {STG*st}, v{VTA+c}")
    ACC = 120
    NACC = 56 if qkv else NRB*NCB*4
    CS = ACC + NACC
    ONES = CS + 12
    for r in range(NACC + (12 if ln else 0)):
        a(f"v_mov_b32 v{ACC+r}, 0")
    if ln:
        for r in range(4):
            a(f"v_mov_b32 v{ONES+r}, s9")
    FR = [56, 88]
    SF = [196, 200]
    SA, QA = [32, 40], [36, 44]
    vT, vRS, vNM = 208, 52, 54
    if ln:
        for v in range(32, 48):
            a(f"v_mov_b32 v{v}, 0")
        a("v_lshlrev_b32 v30, 11, v2")
    def stat_fill(st):
        return []
    def stat_mfmas(st, a):
        if not ln: return
        O = vr(ONES, 4)
        X = vr(SF[st], 4)
        a(f"v_mfma_f32_16x16x32_bf16 {vr(SA[0],4)}, {O}, {X}, {vr(SA[0],4)}")
        a(f"v_mfma_f32_16x16x32_bf16 {vr(QA[0],4)}, {X}, {X}, {vr(QA[0],4)}")
        if qkv:
            X = vr(FR[st]+16, 4)
            a(f"v_mfma_f32_16x16x32_bf16 {vr(SA[1],4)}, {O}, {X}, {vr(SA[1],4)}")
            a(f"v_mfma_f32_16x16x32_bf16 {vr(QA[1],4)}, {X}, {X}, {vr(QA[1],4)}")
    def frag_reads(st_, ks, st):
        L = []
        base = FR[st]
        ra = (AS+5*(st_-1) if st_ else VRA) + ks
        ta = (AS+5*(st_-1)+2 if st_ else VTA)
        for c in range(3 if qkv else NCB):
            for h in range(2):
                off = ks*32*RS + h*4*RS + (c*128 if qkv else 0)
                L.append(f"ds_read_b64_tr_b16 {vr(base+20+4*c+2*h,2)}, v{ta + (0 if qkv else c)} offset:{off}")
        for b in range(NRB):
            L.append(f"ds_read_b128 {vr(base+4*b,4)}, v{ra} offset:{b*2048}")
        if ln:
            L.append(f"v_add_u32 v31, v30, v{ra}")
            L.append(f"ds_read_b128 {vr(SF[st],4)}, v31")
        return L
    nreads = NRB + 2*(3 if qkv else NCB)
    def mfmas(st, fill):
        M = []
        _mfmas(st, M.append)
        stat_mfmas(st, M.append)
        n, f = len(M), len(fill)
        k = 0
        for i, m in enumerate(M):
            a(m)
            tgt = min(f, 2 * (i + 1)) if i + 1 < n else f
            while k < tgt:
                a(fill[k]); k += 1
    def _mfmas(st, a):
        base = FR[st]
        R = lambda b: vr(base+4*b, 4)
        T = lambda c: vr(base+20+4*c, 4)
        O = vr(ONES, 4)
        if qkv:
            for c in range(2):
                a(f"v_mfma_f32_16x16x32_bf16 {vr(CS+4*c,4)}, {T(c)}, {O}, {vr(CS+4*c,4)}")
            a(f"v_mfma_f32_16x16x32_bf16 {vr(CS+8,4)}, {O}, {T(2)}, {vr(CS+8,4)}")
            for b in range(5):
                if b > 0:
                    q = ACC + 4*(b-1)
                    a(f"v_mfma_f32_16x16x32_bf16 {vr(q,4)}, {T(0)}, {R(b)}, {vr(q,4)}")
                kk = ACC + 16 + 4*b
                a(f"v_mfma_f32_16x16x32_bf16 {vr(kk,4)}, {T(1)}, {R(b)}, {vr(kk,4)}")
                vv = ACC + 36 + 4*b
                a(f"v_mfma_f32_16x16x32_bf16 {vr(vv,4)}, {R(b)}, {T(2)}, {vr(vv,4)}")
        else:
            if win:
                for c in range(3):
                    a(f"v_mfma_f32_16x16x32_bf16 {vr(CS+4*c,4)}, {T(c)}, {O}, {vr(CS+4*c,4)}")
            for b in range(NRB):
                for c in range(NCB):
                    d = ACC + 4*(b*NCB+c)
                    a(f"v_mfma_f32_16x16x32_bf16 {vr(d,4)}, {T(c)}, {R(b)}, {vr(d,4)}")
    stamp(a, name, 1)
    for kt in range(nk):
        a("s_barrier")
        stamp(a, name, 2+kt)
        if kt <= 1:
            for l in frag_reads(kt, 0, 0): a(l)
        a("s_waitcnt lgkmcnt(0)")
        mfmas(0, frag_reads(kt % NST, 1, 1) + stat_fill(0))
        a("s_waitcnt lgkmcnt(0)")
        mfmas(1, (frag_reads((kt+1) % NST, 0, 0) if 0 < kt < nk - 1 else []) + stat_fill(1))
    stamp(a, name, 40)
    if ln:
        a.nop(8)
        a("v_lshrrev_b32 v5, 2, v3")
        a("v_and_b32 v6, 3, v3")
        a("v_cmp_eq_u32 s[60:61], v5, v4")
        a("v_cmp_eq_u32 s[62:63], 1, v6")
        a("v_cmp_eq_u32 s[64:65], 2, v6")
        a("v_cmp_eq_u32 s[66:67], 3, v6")
        a.nop(2)
        def stats_fin(S_, Q_, blk4):
            a(f"v_cndmask_b32 v{Q_}, v{Q_}, v{Q_+1}, s[62:63]")
            a(f"v_cndmask_b32 v{Q_}, v{Q_}, v{Q_+2}, s[64:65]")
            a(f"v_cndmask_b32 v{Q_}, v{Q_}, v{Q_+3}, s[66:67]")
            a(f"v_cndmask_b32 v{Q_}, 0, v{Q_}, s[60:61]")
            reduce4(a, Q_, vT, "v_add_f32")
            ln_stats_finish(a, S_, Q_, vT, 512, vRS, vNM)
            a(f"v_mov_b32 v{vRS+1}, v{vNM}")
            if blk4:
                a("v_add_u32 v5, 64, v3")
            else:
                a("v_lshl_add_u32 v5, v2, 4, v3")
            a("v_lshlrev_b32 v5, 3, v5")
            a(f"v_add_u32 v5, {STATS}, v5")
            a(f"ds_write_b64 v5, v[{vRS}:{vRS+1}]")
        stats_fin(SA[0], QA[0], False)
        if qkv:
            stats_fin(SA[1], QA[1], True)
        a("s_waitcnt lgkmcnt(0)")
        a("s_barrier")
        ST = 56
        a("v_lshlrev_b32 v5, 3, v3")
        a("v_lshlrev_b32 v6, 5, v4")
        a(f"v_add_u32 v5, {STATS}, v5")
        a(f"v_add_u32 v6, {STATS}, v6")
        for b in range(NRB):
            a(f"ds_read_b64 {vr(ST+2*b,2)}, v5 offset:{b*128}")
        if qkv:
            for b in range(5):
                a(f"ds_read_b128 {vr(ST+12+8*b,4)}, v6 offset:{b*128}")
                a(f"ds_read_b128 {vr(ST+16+8*b,4)}, v6 offset:{b*128 + 16}")
        a("s_waitcnt lgkmcnt(0)")
        a.nop(6)
        if qkv:
            for b in range(5):
                for e in range(4):
                    if b > 0:
                        q = ACC + 4*(b-1) + e
                        a(f"v_mul_f32 v{q}, v{q}, v{ST+2*b}")
                        a(f"v_fmac_f32 v{q}, v{CS+e}, v{ST+2*b+1}")
                    kk = ACC + 16 + 4*b + e
                    a(f"v_mul_f32 v{kk}, v{kk}, v{ST+2*b}")
                    a(f"v_fmac_f32 v{kk}, v{CS+4+e}, v{ST+2*b+1}")
                    vv = ACC + 36 + 4*b + e
                    a(f"v_mul_f32 v{vv}, v{vv}, v{ST+12+8*b+2*e}")
                    a(f"v_fmac_f32 v{vv}, v{CS+8}, v{ST+12+8*b+2*e+1}")
            attn_epilogue(a, ACC, sO)
        else:
            for b in range(4):
                for c in range(3):
                    for e in range(4):
                        d = ACC + 4*(b*3+c) + e
                        a(f"v_mul_f32 v{d}, v{d}, v{ST+2*b}")
                        a(f"v_fmac_f32 v{d}, v{CS+4*c+e}, v{ST+2*b+1}")
            g3_epilogue(a, ACC)
    else:
        a("s_waitcnt vmcnt(0)")
        a.nop(10)
    if res:
        for b in range(2):
            for c in range(NCB):
                d = ACC + 4*(b*NCB+c); x = EP + 2*(b*NCB+c)
                T = 56
                for p in range(2):
                    a(f"v_cvt_pk_bf16_f32 v{T}, v{d+2*p}, v{d+2*p+1}")
                    a(f"v_lshlrev_b32 v{d+2*p}, 16, v{T}")
                    a(f"v_and_b32 v{d+2*p+1}, 0xffff0000, v{T}")
                    a(f"v_lshlrev_b32 v{T+1}, 16, v{x+p}")
                    a(f"v_and_b32 v{T+2}, 0xffff0000, v{x+p}")
                    a(f"v_add_f32 v{d+2*p}, v{d+2*p}, v{T+1}")
                    a(f"v_add_f32 v{d+2*p+1}, v{d+2*p+1}, v{T+2}")
                a(f"v_cvt_pk_bf16_f32 v{d}, v{d}, v{d+1}")
                a(f"v_cvt_pk_bf16_f32 v{d+1}, v{d+2}, v{d+3}")
                a(f"buffer_store_dwordx2 {vr(d,2)}, v{20+b}, {sr(sO,4)}, 0 offen offset:{c*32}")
    if sp:
        a("v_lshlrev_b32 v28, 16, v28")
        a("v_lshlrev_b32 v29, 16, v29")
        for b in range(2):
            for c in range(NCB):
                d = ACC + 4*(b*NCB+c); x = EP + 2*(b*NCB+c)
                T = 56
                for p in range(2):
                    a(f"v_cvt_pk_bf16_f32 v{T}, v{d+2*p}, v{d+2*p+1}")
                    a(f"v_lshlrev_b32 v{d+2*p}, 16, v{T}")
                    a(f"v_and_b32 v{d+2*p+1}, 0xffff0000, v{T}")
                    a(f"v_add_f32 v{d+2*p}, v{d+2*p}, v{28+b}")
                    a(f"v_add_f32 v{d+2*p+1}, v{d+2*p+1}, v{28+b}")
                    a(f"v_cvt_pk_bf16_f32 v{T}, v{d+2*p}, v{d+2*p+1}")
                    a(f"v_lshlrev_b32 v{d+2*p}, 16, v{T}")
                    a(f"v_and_b32 v{d+2*p+1}, 0xffff0000, v{T}")
                    a(f"v_lshlrev_b32 v{T+1}, 16, v{x+p}")
                    a(f"v_and_b32 v{T+2}, 0xffff0000, v{x+p}")
                    a(f"v_mul_f32 v{d+2*p}, v{d+2*p}, v{T+1}")
                    a(f"v_mul_f32 v{d+2*p+1}, v{d+2*p+1}, v{T+2}")
                a(f"v_cvt_pk_bf16_f32 v{d}, v{d}, v{d+1}")
                a(f"v_cvt_pk_bf16_f32 v{d+1}, v{d+2}, v{d+3}")
                so = "s13" if b else "0"
                a(f"buffer_store_dwordx2 {vr(d,2)}, v{24+c}, {sr(sO,4)}, {so} offen")
    stamp(a, name, 41)
    stamp_flush(a, name)
    kernel_end(a, name)
    return 256 if (STAMP or prefetch) else 248

def gen_ln2(a, name):
    kernel_begin(a, name, 256)
    sI, sO = 40, 44
    srd(a, sI, P_WS, Z2_OFF, S * FH * 2)
    srd(a, sO, P_WS, Z2N_OFF, 8 * S * 192)
    a("s_mov_b32 s9, 0x3f803f80")
    a("s_lshl_b32 s4, s2, 2")
    a("s_add_u32 s4, s4, s3")
    a("s_lshl_b32 s4, s4, 1")
    a(f"s_mul_i32 s5, s4, {FH*2}")
    a("v_lshlrev_b32 v5, 4, v1")
    a("v_add_u32 v5, s5, v5")
    a("v_mov_b32 v7, -1")
    a("v_add_u32 v6, 1024, v5")
    a("v_cmp_gt_u32 s[50:51], 22, v1")
    a.nop(2)
    a("v_cndmask_b32 v6, v7, v6, s[50:51]")
    a(f"s_mov_b32 s6, {FH*2}")
    for j in range(2):
        so = "s6" if j else "0"
        a(f"buffer_load_dwordx4 {vr(16+8*j,4)}, v5, {sr(sI,4)}, {so} offen")
        a(f"buffer_load_dwordx4 {vr(20+8*j,4)}, v6, {sr(sI,4)}, {so} offen")
    a("s_mul_i32 s7, s4, 192")
    for g in range(2):
        a(f"v_add_u32 v8, {64*g}, v1")
        a("v_mul_u32_u24 v9, 5462, v8")
        a("v_lshrrev_b32 v9, 16, v9")
        a("v_mul_u32_u24 v10, 12, v9")
        a("v_sub_u32 v10, v8, v10")
        a(f"s_mov_b32 s11, {S*192}")
        a("v_mul_lo_u32 v9, v9, s11")
        a("v_lshl_add_u32 v9, v10, 4, v9")
        a(f"v_add_u32 v{12+g}, s7, v9")
    a("v_cmp_gt_u32 vcc, 32, v1")
    a.nop(2)
    a("v_cndmask_b32 v13, v7, v13, vcc")
    a("s_mov_b32 s8, 192")
    for j in range(2):
        X = 16 + 8*j
        vS, vQ, vT, vRS, vNM, vTL = 40, 41, 42, 44, 46, 48
        a(f"v_mov_b32 v{vS}, 0")
        a(f"v_mov_b32 v{vQ}, 0")
        a(f"s_waitcnt vmcnt({2-2*j})" if j == 0 else "s_waitcnt vmcnt(2)")
        for r in range(8):
            a(f"v_dot2_f32_bf16 v{vS}, v{X+r}, s9, v{vS}")
            a(f"v_dot2_f32_bf16 v{vQ}, v{X+r}, v{X+r}, v{vQ}")
        a.nop(3)
        for v in (vS, vQ):
            for dpp in ("quad_perm:[1,0,3,2]", "quad_perm:[2,3,0,1]", "row_half_mirror", "row_mirror"):
                a(f"v_add_f32_dpp v{v}, v{v}, v{v} {dpp} row_mask:0xf bank_mask:0xf")
                a.nop(2)
            reduce4(a, v, vT, "v_add_f32")
        ln_stats_finish(a, vS, vQ, vT, FH, vRS, vNM)
        for r in range(8):
            normalize_reg(a, X+r, vTL + 2*(r&1), vRS, vNM)
        for r in range(4, 8):
            a(f"v_cndmask_b32 v{X+r}, 0, v{X+r}, s[50:51]")
        so = "s8" if j else "0"
        a(f"buffer_store_dwordx4 {vr(X,4)}, v12, {sr(sO,4)}, {so} offen")
        a(f"buffer_store_dwordx4 {vr(X+4,4)}, v13, {sr(sO,4)}, {so} offen")
    kernel_end(a, name)
    return 64

def main():
    a = Asm()
    descs = []
    launches = []
    def add(name, vg, lds, blk=512):
        descs.append(kernel_desc(name, vg))
        launches.append(f"; @launch kernel={name} grid=(256,1,1) block=({blk},1,1) lds={lds}")
    for rnd in range(2):
        xin_base, xin_off = (P_X, 0) if rnd == 0 else (P_WS, X2_OFF)
        xo_base, xo_off = (P_WS, X2_OFF) if rnd == 0 else (P_OUT, 0)
        n = f"g1a{rnd}_kernel"
        pf = [(P_WO, 512*512*2), (P_WIN, 512*1376*2), (P_WSP, S*S*2), (P_WOUT, FH*512*2)] if rnd == 0 else None
        vg = gen_gemm(a, n, 'qkv', 8, xin_base, xin_off, S*D*2, 1024, P_WQKV, 512*1536*2, 3072, prefetch=pf)
        add(n, vg, gemm_lds('qkv'))
        n = f"g2r{rnd}_kernel"
        vg = gen_gemm(a, n, 'res', 8, P_WS, O_OFF, S*D*2, 1024, P_WO, 512*512*2, 1024,
                      res_base=xin_base, res_off=xin_off, out_base=P_WS, out_off=X1_OFF)
        add(n, vg, gemm_lds('res'))
        if rnd == 0:
            n = "g3_kernel"
            vg = gen_gemm(a, n, 'win', 8, P_WS, X1_OFF, S*D*2, 1024, P_WIN, 512*1376*2, 2752)
            add(n, vg, gemm_lds('win'))
            n = "ln2_kernel"; vg = gen_ln2(a, n); add(n, vg, 0, 256)
            n = "g4_kernel"
            vg = gen_gemm(a, n, 'sp', 32, P_WSP, 0, S*S*2, 4096, None, 0, 192)
            add(n, vg, gemm_lds('sp'))
        else:
            launches.append(launches[2]); launches.append(launches[3]); launches.append(launches[4])
        n = f"g5r{rnd}_kernel"
        vg = gen_gemm(a, n, 'res', 11, P_WS, U_OFF, S*UST*2, UST*2, P_WOUT, FH*512*2, 1024,
                      res_base=P_WS, res_off=X1_OFF, out_base=xo_base, out_off=xo_off)
        add(n, vg, gemm_lds('res'))
    hdr = open(f"cdna_kernels/{NAME}.s.ref").read().split("\n")
    out = []
    for l in hdr:
        if l.startswith("; @launch"): break
        if "@launch" in l: continue
        out.append(l)
    out += launches
    out.append('.amdgcn_target "amdgcn-amd-amdhsa--gfx950"')
    out.append(".text")
    out += a.lines
    out.append('.section .rodata,"a"')
    for d in descs:
        out.append(".p2align 6")
        out.append(d)
    open(sys.argv[1] if len(sys.argv) > 1 else f"cdna_kernels/{NAME}.s", "w").write("\n".join(out) + "\n")

main()
```
